```python
import torch

def _softmax(x, axis=-1):
    return torch.softmax(x, dim=axis)
def _gelu(x):
    return torch.nn.functional.gelu(x, approximate="tanh")
def _silu(x):
    return torch.nn.functional.silu(x)
def _sigmoid(x):
    return torch.sigmoid(x)
def _layernorm(x, axis=-1, eps=1e-5):
    m = x.mean(dim=axis, keepdim=True)
    v = x.var(dim=axis, keepdim=True, unbiased=False)
    return (x - m) / torch.sqrt(v + eps)
def _scatter_add(tgt, idx, src, axis=0):
    return tgt.clone().index_add_(axis, idx, src)
def _segment_sum(src, seg, n):
    out = torch.zeros((n,) + src.shape[1:], dtype=src.dtype)
    return out.index_add_(0, seg, src)
def _pad(x, pw):
    flat = tuple(v for pair in reversed(pw) for v in pair)
    return torch.nn.functional.pad(x, flat)

kernel_name = 'sequential_preLN__ssm_conv_h3__dense_activation_relu__prompt'

def setup_inputs():

    _w = (lambda a: (lambda t: t.to(torch.bfloat16) if t.is_floating_point() else t)(torch.as_tensor(a)))
    def _A_setup():
        B, S, D = 1, 2048, 512
        ks = 4
        return {
            "q": _w((lambda *s: torch.randn(*s, dtype=torch.bfloat16) * 0.05)(B, S, D)),
            "k": _w((lambda *s: torch.randn(*s, dtype=torch.bfloat16) * 0.4)(B, S, D)),
            "v": _w((lambda *s: torch.randn(*s, dtype=torch.bfloat16) * 0.4)(B, S, D)),
            "shift_k": _w((lambda *s: torch.randn(*s, dtype=torch.bfloat16) * 0.4)(D, ks) * 0.5),
            "ssm_k": _w((lambda *s: torch.randn(*s, dtype=torch.bfloat16) * 0.4)(D, S) * (1.0 / S ** 0.5)),
            "ssm_D": _w((lambda *s: torch.randn(*s, dtype=torch.bfloat16) * 0.4)(D)),
        }
    _A_in = _A_setup()

    def _B_setup():
        B, S, D, Dff = 1, 2048, 512, 1792
        return {
            "x": _w((lambda *s: torch.randn(*s, dtype=torch.bfloat16) * 0.05)(B, S, D)),
            "w1": _w((lambda *s: torch.randn(*s, dtype=torch.bfloat16) * 0.05)(D, Dff)),
            "w2": _w((lambda *s: torch.randn(*s, dtype=torch.bfloat16) * 0.05)(Dff, D)),
        }
    _B_in = _B_setup()

    return {
        "A_q": _A_in["q"],
        "A_k": _A_in["k"],
        "A_v": _A_in["v"],
        "A_shift_k": _A_in["shift_k"],
        "A_ssm_k": _A_in["ssm_k"],
        "A_ssm_D": _A_in["ssm_D"],
        "B_x": _B_in["x"],
        "B_w1": _B_in["w1"],
        "B_w2": _B_in["w2"],
    }

def reference(A_q, A_k, A_v, A_shift_k, A_ssm_k, A_ssm_D, B_x, B_w1, B_w2):
    def _A_ref(q, k, v, shift_k, ssm_k, ssm_D):
        B, S, D = q.shape
        ks = shift_k.shape[-1]
        k_pad = _pad(k, ((0, 0), (ks - 1, 0), (0, 0)))
        k_shift = torch.zeros_like(k)
        for t in range(ks):
            k_shift = k_shift + k_pad[:, t:t + S, :] * shift_k[:, ks - 1 - t][None, None, :]
        kv = k_shift * v
        L = 2 * S
        kv_pad = _pad(kv, ((0, 0), (0, S), (0, 0)))
        kf_pad = _pad(ssm_k, ((0, 0), (0, S)))
        kv_f = (lambda x, axes=(-2,-1): torch.fft.rfft2(x.float(), dim=axes))(kv_pad[:, None, :, :], axes=(1, 2))
        kf_f = (lambda x, axes=(-2,-1): torch.fft.rfft2(x.float(), dim=axes))(kf_pad[:, None, :], axes=(1, 2))
        kf_f = (lambda x, *d: x.permute(*d))(kf_f, 1, 2, 0)
        y_f = kv_f * kf_f[None, :, :, :]
        y = (lambda x, s, axes=(-2,-1): torch.fft.irfft2(x, s=s, dim=axes).to(torch.bfloat16))(y_f, (1, L), axes=(1, 2))[:, 0, :S, :]
        y = y + kv * ssm_D[None, None, :]
        return q * y

    def _B_ref(x, w1, w2):
        h = torch.einsum("bsd,df->bsf", x, w1)
        zero = torch.zeros_like(h)
        h = torch.maximum(h, zero)
        return torch.einsum("bsf,fd->bsd", h, w2)

    x = A_q
    h = x + _A_ref(_layernorm(x, axis=-1), A_k, A_v, A_shift_k, A_ssm_k, A_ssm_D)
    h2 = h + _B_ref(_layernorm(h, axis=-1), B_w1, B_w2)
    return h2
```

```python
import sys
NAME = 'sequential_preLN__ssm_conv_h3__dense_activation_relu__prompt'

WS_EPOCH = 0x0
WS_F1L, WS_F1G = 0x400, 0x800
WS_F2 = 0x1000
WS_F3L, WS_F3G = 0x1800, 0x1C00
WS_STAMP = 0x4000
WS_ST1 = 0x10000
WS_RINV = 0x18000
WS_UR = 0x100000
WS_QT = 0x300000
WS_HT = 0x500000
WS_HF = 0x700000
WS_BYTES = 0x1000000
TAGC = 0x9E3779B9
LX = 131072
LDS_BYTES = 163840

class Cnt:
    def __init__(self, mx): self.n = 0; self.tags = {}; self.mx = mx
    def issue(self, tag=None):
        self.n += 1
        if tag is not None: self.tags[tag] = self.n
    def need(self, tag): return min(self.mx, self.n - self.tags[tag])

class G:
    def __init__(self, diag=False):
        self.l = []; self.uid = 0; self.diag = diag
        self.vm = Cnt(63); self.lg = Cnt(15)
    def __call__(self, s):
        for x in s.strip('\n').split('\n'):
            x = x.strip()
            if x: self.l.append('    ' + x)
    def label(self, n): self.l.append(n + ':')
    def new(self, p='L'):
        self.uid += 1; return '%s%d' % (p, self.uid)
    def vmem(self, s, tag=None): self(s); self.vm.issue(tag)
    def lds(self, s, tag=None): self(s); self.lg.issue(tag)
    def wvm(self, tag): self('s_waitcnt vmcnt(%d)' % self.vm.need(tag))
    def wlg(self, tag): self('s_waitcnt lgkmcnt(%d)' % self.lg.need(tag))
    def stamp(self, i):
        if self.diag:
            self('s_memrealtime s[%d:%d]\ns_waitcnt lgkmcnt(0)\ns_mov_b32 s%d, s%d' % (98, 99, SSTAMP + i, 98))

SQ, SK, SV, SSH, SSSM, SW1, SW2, SOUT, SWS, SDBG = 4, 8, 12, 16, 20, 24, 28, 32, 36, 40
SDP = 44
sG, sR, sW, sTAG, sD, sXCC = 46, 47, 48, 49, 50, 51
sT0, sT1, sT2, sT3, sT4, sT5 = 52, 53, 54, 55, 56, 57
sO1, sO2, sO3 = 58, 59, 60
sC4096 = 61
sSPIN = 62
sFT, sT = 63, 64
sM0 = 65
sEX = 66
sMK = 68
sPC = 70
sKap = 72
sNEED = 73
SSTAMP = 76

def v(i, n=1): return 'v%d' % i if n == 1 else 'v[%d:%d]' % (i, i + n - 1)
def a(i, n=1): return 'a%d' % i if n == 1 else 'a[%d:%d]' % (i, i + n - 1)
def srd(i): return 's[%d:%d]' % (i, i + 3)

def merge(main, fill, first=0, last=None):
    if last is None: last = len(main) - 1
    n = last - first + 1
    out = []; fi = 0
    for i, m in enumerate(main):
        out.append(m)
        if first <= i <= last:
            tgt = (len(fill) * (i - first + 1) + n - 1) // n
            while fi < tgt: out.append(fill[fi]); fi += 1
    out += fill[fi:]
    return out

def round_bf(g, r):
    g('v_cvt_pk_bf16_f32 %s, %s, %s\nv_lshlrev_b32 %s, 16, %s' % (v(r), v(r), v(r), v(r), v(r)))

def allreduce(g, regs, tmp):
    for ctl in ('quad_perm:[1,0,3,2]', 'quad_perm:[2,3,0,1]', 'row_half_mirror', 'row_mirror'):
        g('s_nop 1')
        for r in regs: g('v_add_f32_dpp %s, %s, %s %s row_mask:0xf bank_mask:0xf' % (v(r), v(r), v(r), ctl))
    for op in ('v_permlane16_swap_b32', 'v_permlane32_swap_b32'):
        for r, t in zip(regs, tmp): g('v_mov_b32 %s, %s' % (v(t), v(r)))
        g('s_nop 1')
        for r, t in zip(regs, tmp): g('%s %s, %s' % (op, v(r), v(t)))
        g('s_nop 1')
        for r, t in zip(regs, tmp): g('v_add_f32 %s, %s, %s' % (v(r), v(r), v(t)))

SPIN_MAX = 1 << 20
CODE_BYTES = 21504

def poll_pair(g, offL, offG, need_sgpr, vaddr, vtmp):
    L = g.new('Lp'); D = g.new('Lpd')
    g('s_lshl_b32 s%d, s%d, 7' % (sT0, sG))
    g('v_and_b32 %s, 31, v1\nv_lshlrev_b32 %s, 2, %s' % (v(vaddr), v(vaddr), v(vaddr)))
    g('v_mov_b32 %s, %d\nv_cmp_lt_u32 vcc, 31, v1\ns_nop 1\nv_cndmask_b32 %s, %d, %s, vcc' % (v(vtmp), offG - offL, v(vtmp), 0, v(vtmp)))
    g('v_add_u32 %s, %s, %s\ns_add_u32 s%d, s%d, %d\ns_mov_b32 s%d, 0' % (v(vaddr), v(vaddr), v(vtmp), sT0, sT0, offL, sSPIN))
    g.label(L)
    g('buffer_load_dword %s, %s, %s, s%d offen sc1' % (v(vtmp), v(vaddr), srd(SWS), sT0))
    g('s_add_u32 s%d, s%d, 1\ns_cmp_gt_u32 s%d, %d\ns_cbranch_scc1 %s' % (sSPIN, sSPIN, sSPIN, SPIN_MAX, D))
    g('s_waitcnt vmcnt(0)')
    g('v_cmp_eq_u32 vcc, s%d, %s' % (sTAG, v(vtmp)))
    g('s_nop 0\ns_or_b32 s%d, vcc_lo, vcc_hi\ns_and_b32 s%d, s%d, s%d\ns_cmp_lg_u32 s%d, s%d\ns_cbranch_scc1 %s' % (sT1, sT1, sT1, need_sgpr, sT1, need_sgpr, L))
    g.label(D)
    g('s_waitcnt vmcnt(0)')

def put_flag(g, off_sgpr, flavour):
    L = g.new('Lf')
    g('s_cmp_lg_u32 s%d, 0\ns_cbranch_scc1 %s' % (sW, L))
    g('v_mov_b32 v14, s%d\nv_mov_b32 v15, 0\ns_mov_b64 exec, 1' % sTAG)
    g('buffer_store_dword v14, v15, %s, s%d offen %s' % (srd(SWS), off_sgpr, flavour))
    g('s_mov_b64 exec, -1')
    g.label(L)

def prologue(g):
    g('s_cmp_ge_u32 s2, 256\ns_cbranch_scc1 L_exit')
    for (s, off) in ((SQ, 0), (SK, 8), (SV, 16), (SSH, 24), (SSSM, 32), (SDP, 40), (SW1, 56), (SW2, 64), (SOUT, 72), (SDBG, 80), (SWS, 88)):
        g('s_load_dwordx2 s[%d:%d], s[0:1], %d' % (s, s + 1, off))
    if g.diag: g('s_memrealtime s[98:99]')
    for (s, n) in ((SQ, 0x200000), (SK, 0x200000), (SV, 0x200000), (SSH, 4096), (SSSM, 4096), (SW1, 512 * 3584), (SW2, 1792 * 1024),
                   (SOUT, 0x200000), (SWS, WS_BYTES), (SDBG, 256)):
        g('s_mov_b32 s%d, 0x%x\ns_mov_b32 s%d, 0x20000' % (s + 2, n, s + 3))
    g('s_and_b32 s%d, s2, 7\ns_lshr_b32 s%d, s2, 3' % (sG, sR))
    g('v_and_b32 v1, 63, v0\nv_lshrrev_b32 v2, 6, v0\ns_getreg_b32 s%d, hwreg(HW_REG_XCC_ID)\nv_readfirstlane_b32 s%d, v2' % (sXCC, sW))
    g('s_mov_b32 s%d, 4096' % sC4096)
    g('v_lshrrev_b32 v2, 5, v0\nv_lshlrev_b32 v2, 13, v2\nv_and_b32 v3, 31, v0\nv_lshl_add_u32 v2, v3, 2, v2')
    g('s_lshl_b32 s%d, s%d, 16\ns_lshl_b32 s%d, s%d, 7\ns_add_u32 s%d, s%d, s%d' % (sT0, sR, sT1, sG, sT0, sT0, sT1))
    g('v_add_u32 v2, s%d, v2\nv_subrev_u32 v3, 3072, v2' % sT0)
    g('v_and_b32 v4, 31, v0\nv_lshlrev_b32 v4, 4, v4\ns_lshl_b32 s%d, s%d, 9\nv_add_u32 v4, s%d, v4' % (sT1, sG, sT1))
    g('v_lshlrev_b32 v5, 4, v1')
    g('s_lshl_b32 s%d, s%d, 5\ns_add_u32 s%d, s%d, s%d\ns_lshl_b32 s%d, s%d, 2\ns_add_u32 s%d, s%d, s%d' % (sT2, sG, sT2, sT2, sR, sT2, sT2, sT2, sT2, sW))
    g('s_lshl_b32 s%d, s%d, 11' % (sT3, sT2))
    g('v_lshrrev_b32 v6, 3, v1\nv_lshlrev_b32 v6, 10, v6\nv_and_b32 v7, 7, v1\nv_lshl_add_u32 v6, v7, 4, v6')
    g('s_lshl_b32 s%d, s%d, 14\ns_add_u32 s%d, s%d, s%d' % (sT4, sW, sT4, sT4, sT0))
    g('s_lshl_b32 s%d, s%d, 11\ns_add_u32 s%d, s%d, %d\ns_mov_b32 m0, s%d' % (sT5, sW, sT5, sT5, LX + 9216, sT5))
    g('s_waitcnt lgkmcnt(0)')
    if g.diag: g('s_mov_b32 s%d, s98' % SSTAMP)
    g.vmem('buffer_load_dwordx4 v[36:39], v5, %s, s%d offen' % (srd(SQ), sT3))
    g.vmem('buffer_load_dwordx4 v[40:43], v5, %s, s%d offen offset:1024' % (srd(SQ), sT3), 'qrow')
    g.vmem('buffer_load_dwordx4 v[44:47], v4, %s, 0 offen' % srd(SSH))
    for i in range(3): g.vmem('buffer_load_dword v%d, v3, %s, 0 offen offset:%d' % (16 + i, srd(SK), 1024 * i))
    for i in range(8):
        so = '0' if i < 4 else 's%d' % sC4096
        g.vmem('buffer_load_dword v%d, v2, %s, %s offen offset:%d' % (19 + i, srd(SK), so, 1024 * (i & 3)))
        g.vmem('buffer_load_dword v%d, v2, %s, %s offen offset:%d' % (28 + i, srd(SV), so, 1024 * (i & 3)), 'kv')
    g.vmem('buffer_load_dwordx4 v6, %s, s%d offen lds' % (srd(SQ), sT4))
    g('s_add_u32 s%d, s%d, 7168' % (sT4, sT4))
    g.vmem('buffer_load_dwordx4 v6, %s, s%d offen offset:1024 lds' % (srd(SQ), sT4), 'qtile')
    g('s_load_dword s%d, s[%d:%d], %d' % (sTAG, SWS, SWS + 1, WS_EPOCH))
    g('s_lshl_b32 s%d, s%d, 6\ns_lshl_b32 s%d, s%d, 1\ns_add_u32 s%d, s%d, s%d' % (sT0, sG, sT1, sR, sT0, sT0, sT1))
    g('s_lshl_b32 s%d, s%d, 1\ns_add_u32 s%d, s%d, s%d\ns_addc_u32 s%d, s%d, 0' % (sT1, sT0, SDP, SDP, sT1, SDP + 1, SDP + 1))
    g('s_load_dword s%d, s[%d:%d], 0' % (sD, SDP, SDP + 1))
    g('s_lshr_b32 s%d, s%d, 1\ns_add_u32 s%d, s%d, s%d\ns_lshl_b32 s%d, s%d, 12' % (sT1, sW, sT0, sT0, sT1, sT0, sT0))
    g('s_add_u32 s%d, s%d, s%d\ns_addc_u32 s%d, s%d, 0' % (SSSM, SSSM, sT0, SSSM + 1, SSSM + 1))
    g('s_and_b32 s%d, s%d, 1' % (sKap, sW))
    g('s_lshl_b32 s%d, s%d, 5\ns_add_u32 s%d, s%d, s%d' % (sT0, sG, sT1, sT0, sR))
    g('s_and_b32 s%d, s%d, 15\ns_or_b32 s%d, s%d, 0x80' % (sXCC, sXCC, sXCC, sXCC))
    g('v_mov_b32 v7, s%d\nv_mov_b32 v8, 0\ns_mov_b64 exec, 1' % sXCC)
    g.vmem('buffer_store_byte v7, v8, %s, s%d offen' % (srd(SDBG), sT1))
    g('s_mov_b64 exec, -1')
    g('v_and_b32 v9, 31, v1')
    g.vmem('buffer_load_ubyte v10, v9, %s, s%d offen sc1' % (srd(SDBG), sT0))
    g('s_getpc_b64 s[%d:%d]\nv_lshlrev_b32 v11, 7, v0' % (sPC, sPC + 1))
    g('v_min_u32 v11, %d, v11' % CODE_BYTES)
    g.vmem('global_load_dword v10, v11, s[%d:%d]' % (sPC, sPC + 1))
    g('v_lshlrev_b32 v11, 6, v1')
    g.vmem('buffer_load_dword v10, v11, %s, 0 offen' % srd(SSSM))
    g('s_lshl_b32 s%d, s%d, 18\ns_sub_u32 s%d, 31, s%d\ns_lshl_b32 s%d, s%d, 7\ns_add_u32 s%d, s%d, s%d\ns_add_u32 s%d, s%d, 0x%x'
      % (sO1, sG, sT1, sR, sT1, sT1, sO1, sO1, sT1, sO1, sO1, WS_UR))
    g('v_and_b32 v11, 15, v1\ns_lshl_b32 s%d, s%d, 4\nv_add_u32 v11, s%d, v11\nv_lshlrev_b32 v11, 12, v11' % (sT1, sW, sT1))
    g.vmem('buffer_load_dword v10, v11, %s, s%d offen' % (srd(SWS), sO1))
    g('v_and_b32 v11, 1, v1\nv_mul_u32_u24 v11, %d, v11\ns_lshl_b32 s%d, s%d, 7\ns_add_u32 s%d, s%d, %d' % (WS_F3L - WS_F1L, sT1, sG, sT1, sT1, WS_F1L))
    g.vmem('buffer_load_dword v10, v11, %s, s%d offen sc1' % (srd(SWS), sT1))

def stats1(g):
    g.wvm('qrow')
    X = 48
    for i in range(8):
        g('v_lshlrev_b32 v%d, 16, v%d\nv_and_b32 v%d, 0xffff0000, v%d' % (X + 2 * i, 36 + i, X + 2 * i + 1, 36 + i))
    for base, dst in ((X, 64), (X + 8, 65)):
        g('v_add_f32 v%d, v%d, v%d' % (dst, base, base + 1))
        for j in range(2, 8): g('v_add_f32 v%d, v%d, v%d' % (dst, dst, base + j))
    allreduce(g, [64, 65], [66, 67])
    g('v_mul_f32 v64, 0x3b000000, v64\nv_mul_f32 v65, 0x3b000000, v65')
    for base, mm, dst in ((X, 64, 68), (X + 8, 65, 69)):
        for j in range(8): g('v_sub_f32 v%d, v%d, v%d' % (base + j, base + j, mm))
        g('v_mul_f32 v%d, v%d, v%d' % (dst, base, base))
        for j in range(1, 8): g('v_fmac_f32 v%d, v%d, v%d' % (dst, base + j, base + j))
    allreduce(g, [68, 69], [66, 67])
    for r in (68, 69):
        g('v_mul_f32 v%d, 0x3b000000, v%d' % (r, r)); round_bf(g, r)
        g('v_add_f32 v%d, 0x3727c5ac, v%d' % (r, r)); round_bf(g, r)
        g('v_sqrt_f32 v%d, v%d' % (r, r))
    g('s_waitcnt lgkmcnt(0)\ns_add_u32 s%d, s%d, 0x%x' % (sTAG, sTAG, TAGC))
    g('v_cvt_pk_bf16_f32 v70, v64, v68\nv_mov_b32 v71, s%d\nv_cvt_pk_bf16_f32 v72, v65, v69\nv_mov_b32 v73, s%d' % (sTAG, sTAG))
    g('s_lshl_b32 s%d, s%d, 4\ns_add_u32 s%d, s%d, 0x%x\nv_mov_b32 v8, 0\ns_mov_b64 exec, 1' % (sT2, sT2, sT2, sT2, WS_ST1))
    g.vmem('buffer_store_dwordx4 v[70:73], v8, %s, s%d offen sc1' % (srd(SWS), sT2))
    g('s_mov_b64 exec, -1')

def aloads(g):
    g('v_and_b32 v8, 15, v1\nv_lshrrev_b32 v9, 4, v1\nv_add_u32 v11, 1, v8\nv_and_b32 v12, 1, v11\nv_lshlrev_b32 v126, 4, v12')
    g('v_and_b32 v11, 0xfe, v11\nv_lshl_add_u32 v11, v9, 5, v11\nv_lshlrev_b32 v11, 1, v11\ns_lshl_b32 s%d, s%d, 8\nv_add_u32 v11, s%d, v11' % (sT0, sKap, sT0))
    for Ql in range(8):
        for m in range(4):
            g.vmem('buffer_load_dwordx4 %s, v11, %s, 0 offen offset:%d' % (v(128 + 16 * Ql + 4 * m, 4), srd(SSSM), 512 * Ql + 16 * m))
        g.vmem('buffer_load_dword v%d, v11, %s, 0 offen offset:%d' % (118 + Ql, srd(SSSM), 512 * Ql + 64), 'A%d' % Ql)
    g('v_lshl_add_u32 v12, v9, 3, v8\nv_subrev_u32 v12, 15, v12\nv_lshlrev_b32 v12, 1, v12')
    g('v_mov_b32 v13, 0x80000000\nv_cmp_lt_u32 vcc, 31, v1\ns_nop 1\nv_cndmask_b32 v12, v12, v13, vcc')
    for j in range(8):
        g('v_add_u32 v13, %d, v12' % (2 * j))
        g.vmem('buffer_load_ushort v%d, v13, %s, 0 offen' % (110 + j, srd(SSSM)), 'A0')

def afix(g):
    for Ql in range(8):
        g.wvm('A%d' % Ql)
        b = 128 + 16 * Ql
        for i in range(15): g('v_alignbit_b32 v%d, v%d, v%d, v126' % (b + i, b + i + 1, b + i))
        g('v_alignbit_b32 v%d, v%d, v%d, v126' % (b + 15, 118 + Ql, b + 15))
    g.wvm('A0')
    g('s_lshr_b32 s%d, s%d, 1\ns_lshl_b32 s%d, s%d, 4\ns_lshr_b32 s%d, s%d, s%d\ns_and_b32 s%d, s%d, 0xffff' % (sT0, sW, sT0, sT0, sT0, sD, sT0, sT0, sT0))
    g('v_and_b32 v8, 15, v1\nv_bfe_u32 v9, v1, 4, 1\nv_lshl_add_u32 v8, v9, 3, v8\nv_sub_u32 v8, 15, v8')
    g('v_mov_b32 v9, 64\nv_cmp_lt_u32 vcc, 31, v1\ns_nop 1\nv_cndmask_b32 v8, v9, v8, vcc\nv_mov_b32 v9, s%d' % sT0)
    for j in range(8):
        g('v_cmp_eq_u32 vcc, %d, v8\ns_nop 1\nv_cndmask_b32 v%d, v%d, v9, vcc' % (j, 110 + j, 110 + j))
    for j in range(4):
        g('v_lshl_or_b32 v%d, v%d, 16, v%d' % (122 + j, 111 + 2 * j, 110 + 2 * j))

def p0_compute(g):
    g.wvm('kv')
    for j in range(4):
        op0 = 'v_lshlrev_b32 v%d, 16, v%d' if j % 2 == 0 else 'v_and_b32 v%d, 0xffff0000, v%d'
        g(op0 % (86 + 2 * j, 44 + j // 2)); g(op0 % (87 + 2 * j, 46 + j // 2))
    for i in range(11): g('v_lshlrev_b32 v%d, 16, v%d\nv_and_b32 v%d, 0xffff0000, v%d' % (48 + 2 * i, 16 + i, 49 + 2 * i, 16 + i))
    for i in range(8): g('v_lshlrev_b32 v%d, 16, v%d\nv_and_b32 v%d, 0xffff0000, v%d' % (70 + 2 * i, 28 + i, 71 + 2 * i, 28 + i))
    for i in range(8): g('v_pk_mul_f32 %s, %s, %s' % (v(94 + 2 * i, 2), v(48 + 2 * i, 2), v(92, 2)))
    for j in (2, 1, 0):
        for i in range(8): g('v_pk_fma_f32 %s, %s, %s, %s' % (v(94 + 2 * i, 2), v(48 + 2 * (i + 3 - j), 2), v(86 + 2 * j, 2), v(94 + 2 * i, 2)))
    for i in range(8): g('v_pk_mul_f32 %s, %s, %s' % (v(94 + 2 * i, 2), v(94 + 2 * i, 2), v(70 + 2 * i, 2)))
    for e in range(2):
        for jj in range(4): g('v_cvt_pk_bf16_f32 v%d, v%d, v%d' % (16 + 4 * e + jj, 94 + 2 * (7 - 2 * jj) + e, 94 + 2 * (6 - 2 * jj) + e))
    g('v_and_b32 v8, 31, v0\nv_mul_u32_u24 v8, 144, v8\nv_lshrrev_b32 v9, 5, v0\nv_sub_u32 v9, 7, v9\nv_lshl_add_u32 v8, v9, 4, v8\nv_add_u32 v8, %d, v8' % LX)
    g('ds_write_b128 v8, v[16:19]\nds_write_b128 v8, v[20:23] offset:%d' % (32 * 144))
    g('v_bfe_u32 v8, v1, 3, 1\nv_lshlrev_b32 v8, 5, v8\nv_lshrrev_b32 v9, 4, v1\nv_add_u32 v8, v8, v9\ns_lshl_b32 s%d, s%d, 3\nv_add_u32 v8, s%d, v8' % (sT0, sW, sT0))
    g('v_mul_u32_u24 v8, 144, v8\nv_and_b32 v9, 7, v1\nv_lshl_add_u32 v8, v9, 4, v8\nv_add_u32 v8, %d, v8' % LX)
    g('v_lshrrev_b32 v11, 3, v1\ns_lshl_b32 s%d, s%d, 4\nv_add_u32 v11, s%d, v11\nv_lshlrev_b32 v11, 12, v11\nv_lshl_add_u32 v11, v9, 4, v11' % (sT0, sW, sT0))
    g('v_bfe_u32 v12, v1, 2, 2\nv_lshlrev_b32 v12, 7, v12\nv_lshrrev_b32 v13, 4, v1\nv_lshl_add_u32 v12, v13, 5, v12\nv_and_b32 v13, 3, v1\nv_lshl_add_u32 v12, v13, 3, v12')
    g('v_add_u32 v12, s%d, v12' % sT5)
    g.wvm('qtile')
    for i in range(4): g('ds_read_b64_tr_b16 %s, v12 offset:%d' % (v(28 + 2 * i, 2), 512 * i))
    g('s_waitcnt lgkmcnt(0)\ns_barrier')
    g('ds_read_b128 v[16:19], v8\nds_read_b128 v[20:23], v8 offset:%d' % (4 * 144))

def census(g):
    L = g.new('Lc')
    g('s_lshl_b32 s%d, s%d, 5\nv_and_b32 v9, 31, v1\ns_mov_b32 s%d, 0' % (sT0, sG, sSPIN))
    g.label(L)
    g('buffer_load_ubyte v10, v9, %s, s%d offen sc1' % (srd(SDBG), sT0))
    g('s_add_u32 s%d, s%d, 1\ns_waitcnt vmcnt(0)' % (sSPIN, sSPIN))
    g('v_cmp_ne_u32 vcc, s%d, v10\ns_cbranch_vccz L_loc' % sXCC)
    g('s_cmp_lt_u32 s%d, 6\ns_cbranch_scc1 %s\ns_branch L_glob' % (sSPIN, L))

def dma4(g, vaddr, srdreg, n, vstep, tag=None, flags=''):
    out = []
    for i in range(n):
        j = i & 3
        so = '0' if j == 0 else 's%d' % (sO1 + j - 1)
        pre = ''
        if j == 0 and i > 0:
            pre = 's_add_u32 m0, m0, 4096\nv_add_u32 %s, %d, %s\n' % (v(vaddr), vstep, v(vaddr))
        out.append(pre + 'buffer_load_dwordx4 %s, %s, %s offen offset:%d %s lds' % (v(vaddr), srd(srdreg), so, 1024 * j, flags))
    return out

def w2reg(phi):
    return a(128 + 4 * phi, 4) if phi < 32 else v(160 + 4 * (phi - 32), 4)
def w2half(phi, t):
    return a(128 + 4 * phi + 2 * t, 2) if phi < 32 else v(160 + 4 * (phi - 32) + 2 * t, 2)

def tr_addr(g, dst, tmp, pitch_sh):
    g('v_lshrrev_b32 %s, 5, v1\nv_lshlrev_b32 %s, 2, %s\nv_bfe_u32 %s, v1, 2, 2\nv_add_u32 %s, %s, %s\nv_lshlrev_b32 %s, %d, %s'
      % (v(dst), v(dst), v(dst), v(tmp), v(dst), v(dst), v(tmp), v(dst), pitch_sh, v(dst)))
    g('v_bfe_u32 %s, v1, 4, 1\nv_lshl_add_u32 %s, %s, 5, %s\nv_and_b32 %s, 3, v1\nv_lshl_add_u32 %s, %s, 3, %s'
      % (v(tmp), v(dst), v(tmp), v(dst), v(tmp), v(dst), v(tmp), v(dst)))

def qn_code():
    f = []
    for it in range(2):
        for j in range(8):
            s0 = 88 + 16 * it + 2 * j; s1 = s0 + 1; qr = 80 + 4 * it + j // 2
            f.append('v_cmp_ne_u32 vcc, s%d, v%d' % (sTAG, s1))
            f.append('v_and_b32 v%d, 0xffff0000, v%d' % (8, s0) + '\ns_or_b64 s[%d:%d], s[%d:%d], vcc' % (sMK, sMK + 1, sMK, sMK + 1))
            f.append('v_rcp_f32 v8, v8')
            f.append(('v_lshlrev_b32 v%d, 16, v%d' if j % 2 == 0 else 'v_and_b32 v%d, 0xffff0000, v%d') % (s1, qr))
            f.append('v_lshlrev_b32 v%d, 16, v%d' % (s0, s0))
            f.append('v_sub_f32 v%d, v%d, v%d' % (s0, s1, s0))
            f.append('v_mul_f32 v%d, v%d, v8' % (s0, s0))
    return f

def body(g, loc):
    fl = '' if loc else 'sc1'
    sfx = 'a' if loc else 'b'
    g('s_lshl_b32 s%d, s%d, 18\ns_lshl_b32 s%d, s%d, 13\ns_add_u32 s%d, s%d, s%d\ns_lshl_b32 s%d, s%d, 11\ns_add_u32 s%d, s%d, s%d\ns_add_u32 s%d, s%d, 0x%x'
      % (sT0, sG, sT1, sR, sT0, sT0, sT1, sT1, sW, sT0, sT0, sT1, sT0, sT0, WS_QT))
    g('s_add_u32 s%d, s%d, 0x8000\ns_waitcnt lgkmcnt(0)' % (sT1, sO1))
    g('buffer_store_dwordx4 v[16:19], v11, %s, s%d offen %s' % (srd(SWS), sO1, fl))
    g('buffer_store_dwordx4 v[20:23], v11, %s, s%d offen %s' % (srd(SWS), sT1, fl))
    g('buffer_store_dwordx4 v[28:31], v5, %s, s%d offen %s' % (srd(SWS), sT0, fl))
    g('buffer_store_dwordx4 v[32:35], v5, %s, s%d offen offset:1024 %s' % (srd(SWS), sT0, fl))
    afix(g)
    g('s_waitcnt vmcnt(0)\ns_barrier')
    g('s_lshl_b32 s%d, s%d, 7\ns_lshl_b32 s%d, s%d, 2\ns_add_u32 s%d, s%d, s%d\ns_add_u32 s%d, s%d, %d' % (sT2, sG, sT1, sR, sT2, sT2, sT1, sT2, sT2, WS_F1L if loc else WS_F1G))
    put_flag(g, sT2, fl)
    g.stamp(2)
    g('s_lshl_b32 s%d, s%d, 13\ns_add_u32 s%d, s%d, %d' % (sT5, sW, sT5, sT5, LX))
    g('v_mov_b32 v16, 0\nv_mov_b32 v17, 0\nv_lshlrev_b32 v8, 3, v1\nv_add_u32 v8, s%d, v8\nds_write_b64 v8, v[16:17] offset:4096' % sT5)
    g('v_and_b32 v8, 15, v1\nv_lshrrev_b32 v9, 4, v1\nv_lshlrev_b32 v2, 6, v9\nv_lshlrev_b32 v8, 5, v8\nv_sub_u32 v2, v2, v8')
    g('s_lshl_b32 s%d, s%d, 8\ns_add_u32 s%d, s%d, s%d\ns_add_u32 s%d, s%d, 512\nv_add_u32 v2, s%d, v2' % (sT0, sKap, sT0, sT0, sT5, sT0, sT0, sT0))
    g('v_and_b32 v9, 1, v9\nv_lshlrev_b32 v3, 4, v9\nv_sub_u32 v3, v3, v8')
    g('s_lshl_b32 s%d, s%d, 11\ns_sub_u32 s%d, s%d, s%d\ns_add_u32 s%d, s%d, %d\nv_add_u32 v3, s%d, v3' % (sT0, sKap, sT0, sT5, sT0, sT0, sT0, 2 * (2032 - 768), sT0))
    g('v_lshrrev_b32 v8, 3, v1\ns_lshl_b32 s%d, s%d, 4\nv_add_u32 v8, s%d, v8\nv_and_b32 v9, 3, v1\nv_lshl_add_u32 v6, v8, 2, v9' % (sT0, sW, sT0))
    g('v_lshlrev_b32 v4, 10, v6\nv_bfe_u32 v10, v1, 2, 1\nv_lshl_add_u32 v4, v10, 4, v4\nv_lshlrev_b32 v6, 6, v6')
    g('v_lshlrev_b32 v7, 15, v8\nv_and_b32 v11, 7, v1\nv_lshl_add_u32 v7, v11, 4, v7')
    g('v_lshlrev_b32 v12, 3, v8\nv_lshl_add_u32 v12, v9, 1, v12\nv_and_b32 v11, 3, v8\nv_xor_b32 v12, v12, v11\nv_lshlrev_b32 v12, 4, v12\nv_lshl_add_u32 v12, v10, 14, v12\nv_add_u32 v12, %d, v12\nv_xor_b32 v13, 16, v12' % LX)
    g('v_and_b32 v8, 15, v1\nv_lshrrev_b32 v9, 4, v1\nv_lshl_add_u32 v9, v8, 2, v9\nv_bfe_u32 v8, v1, 1, 2\nv_xor_b32 v9, v9, v8\nv_lshlrev_b32 v127, 4, v9\nv_add_u32 v127, s%d, v127' % sT5)
    g('s_mov_b32 s%d, -1' % sNEED)
    poll_pair(g, WS_F1L, WS_F1G, sNEED, 8, 9)
    g.stamp(3)
    g.vm = Cnt(63); g.lg = Cnt(15)
    g('s_lshl_b32 s%d, s%d, 6\ns_lshl_b32 s%d, s%d, 1\ns_add_u32 s%d, s%d, s%d\ns_lshr_b32 s%d, s%d, 1\ns_add_u32 s%d, s%d, s%d\ns_lshl_b32 s%d, s%d, 12\ns_add_u32 s%d, s%d, 0x%x'
      % (sT0, sG, sT1, sR, sT0, sT0, sT1, sT1, sW, sT1, sT0, sT1, sT1, sT1, sT1, sT1, WS_UR))
    g('s_mov_b32 m0, s%d\ns_lshl_b32 s%d, s%d, 6' % (sT5, sT4, sT0))
    for i in range(4): g.vmem('buffer_load_dwordx4 v5, %s, s%d offen offset:%d sc1 lds' % (srd(SWS), sT1, 1024 * i), 'ur')
    g('s_lshl_b32 s%d, s%d, 18\ns_lshl_b32 s%d, s%d, 5\ns_add_u32 s%d, s%d, s%d\ns_add_u32 s%d, s%d, 0x%x\ns_add_u32 s%d, s%d, 0x8000' % (sT0, sG, sT1, sR, sT0, sT0, sT1, sT0, sT0, WS_QT, sT1, sT0))
    g.vmem('buffer_load_dwordx4 v[80:83], v4, %s, s%d offen sc1' % (srd(SWS), sT0))
    g.vmem('buffer_load_dwordx4 v[84:87], v4, %s, s%d offen sc1' % (srd(SWS), sT1))
    def stat_loads(cnt):
        g('s_mov_b32 s%d, 0x%x' % (sT0, WS_ST1))
        for it in range(2):
            for i in range(4):
                s = 'buffer_load_dwordx4 %s, v6, %s, s%d offen offset:%d sc1' % (v(88 + 16 * it + 4 * i, 4), srd(SWS), sT0, 2048 * it + 16 * i)
                if cnt: g.vmem(s, 'st')
                else: g(s)
    stat_loads(True)
    g('s_cmp_ge_u32 s%d, 14\ns_cselect_b32 s%d, 1, 0\ns_mul_i32 s%d, s%d, 14\ns_sub_u32 s%d, s%d, s%d' % (sR, sT, sT0, sT, sFT, sR, sT0))
    g('s_min_u32 s%d, s%d, 13\ns_lshl_b32 s%d, s%d, 1\ns_add_u32 s%d, s%d, s%d' % (sFT, sFT, sT0, sG, sT, sT, sT0))
    g('s_mov_b32 s%d, %d\ns_mov_b32 s%d, %d\ns_mov_b32 s%d, %d' % (sO1, 56320, sO2, 2 * 56320, sO3, 3 * 56320))
    g('v_lshrrev_b32 v8, 2, v1\nv_mul_u32_u24 v8, 3584, v8\nv_and_b32 v9, 3, v1\nv_lshl_add_u32 v8, v9, 4, v8')
    g('s_lshl_b32 s%d, s%d, 8\ns_lshl_b32 s%d, s%d, 6\ns_add_u32 s%d, s%d, s%d\nv_add_u32 v8, s%d, v8' % (sT0, sFT, sT1, sW, sT0, sT0, sT1, sT0))
    g('s_lshl_b32 s%d, s%d, 15\ns_mov_b32 m0, s%d' % (sM0, sW, sM0))
    w1dma = dma4(g, 8, SW1, 32, 4 * 57344)
    main = []
    ring = lambda i: v(48 + 4 * (i % 8), 4)
    reads = [(pi, m) for pi in range(0, -8, -1) for m in range(4)]
    g('s_mov_b64 s[%d:%d], 0' % (sMK, sMK + 1))
    g.wvm('ur')
    g('s_waitcnt lgkmcnt(0)')
    g.stamp(4)
    rd = lambda i: 'ds_read_b128 %s, v2 offset:%d' % (ring(i), (reads[i][0] + 7) * 512 + 16 * reads[i][1])
    AH = 6
    for i in range(AH): g(rd(i))
    seq = []
    for i, (pi, m) in enumerate(reads):
        pre = 's_waitcnt lgkmcnt(%d)\n' % min(AH - 1, len(reads) - 1 - i)
        first = True
        for n in range(-pi, 8):
            c = '0' if i == 0 else v(16 + 4 * n, 4)
            s = 'v_mfma_f32_16x16x32_bf16 %s, %s, %s, %s' % (v(16 + 4 * n, 4), v(128 + 16 * (pi + n) + 4 * m, 4), ring(i), c)
            if first:
                s = pre + s
                if i + AH < len(reads): s += '\n' + rd(i + AH)
                first = False
            seq.append(s)
    for s in w1dma: g.vm.issue('w1')
    fill = w1dma + ['s_waitcnt vmcnt(%d)' % g.vm.need('st')] + qn_code()
    for s in merge(seq, fill, 2, 125): g(s)
    for i in range(4): g('ds_read_b128 %s, v3 offset:%d' % (ring(i), (3 - i) * 512))
    Lk = 'Lk1' + sfx; Lj = 'Lkj' + sfx
    g('s_cmp_lg_u32 s%d, 0\ns_cbranch_scc1 %s' % (sKap, Lk))
    for kap in range(2):
        if kap: g.label(Lk)
        for i in range(4):
            g('s_waitcnt lgkmcnt(%d)\nv_mfma_f32_16x16x32_bf16 %s, v[122:125], %s, %s' % (3 - i, v(16 + 4 * (4 * kap + i), 4), ring(i), v(16 + 4 * (4 * kap + i), 4)))
        if not kap: g('s_branch %s' % Lj)
    g.label(Lj)
    Ls = 'Lst' + sfx; Lo = 'Lsto' + sfx
    g('s_mov_b32 s%d, 0' % sSPIN)
    g.label(Ls)
    g('s_cmp_eq_u64 s[%d:%d], 0\ns_cbranch_scc1 %s' % (sMK, sMK + 1, Lo))
    g('s_add_u32 s%d, s%d, 1\ns_cmp_gt_u32 s%d, %d\ns_cbranch_scc1 %s' % (sSPIN, sSPIN, sSPIN, SPIN_MAX, Lo))
    g('s_sleep 4\ns_mov_b64 s[%d:%d], 0' % (sMK, sMK + 1))
    stat_loads(False)
    g('s_waitcnt vmcnt(0)')
    for s in qn_code(): g(s + ('\ns_nop 0' if 'rcp' in s else ''))
    g('s_branch %s' % Ls)
    g.label(Lo)
    g('s_nop 4')
    g.stamp(5)
    for n in range(8): g('ds_write_b128 v127, %s offset:%d' % (v(16 + 4 * n, 4), 1024 * n))
    g('s_waitcnt lgkmcnt(0)\ns_barrier')
    for it in range(2):
        for kap in range(2):
            g('ds_read_b128 %s, v12 offset:%d' % (v(16 + 16 * it + 8 * kap, 4), 8192 * kap + 1024 * it))
            g('ds_read_b128 %s, v13 offset:%d' % (v(20 + 16 * it + 8 * kap, 4), 8192 * kap + 1024 * it))
    g('s_add_u32 s%d, s%d, 0x%x\ns_add_u32 s%d, s%d, 0x40000' % (sT4, sT4, WS_HT, sT3, sT4))
    for it in range(2):
        g('s_waitcnt lgkmcnt(%d)' % (4 - 4 * it))
        b = 16 + 16 * it
        for j in range(0, 8, 2): g('v_pk_add_f32 %s, %s, %s' % (v(b + j, 2), v(b + j, 2), v(b + 8 + j, 2)))
        for j in range(8): g('v_fmac_f32 v%d, v%d, v%d' % (89 + 16 * it + 2 * j, 88 + 16 * it + 2 * j, b + j))
        for j in range(4): g('v_cvt_pk_bf16_f32 v%d, v%d, v%d' % (b + j, 89 + 16 * it + 4 * j, 91 + 16 * it + 4 * j))
        g('buffer_store_dwordx4 %s, v7, %s, s%d offen sc1' % (v(b, 4), srd(SWS), sT4 if it == 0 else sT3))
    g('s_waitcnt vmcnt(0)\ns_barrier')
    g('s_lshl_b32 s%d, s%d, 7\ns_lshl_b32 s%d, s%d, 2\ns_add_u32 s%d, s%d, s%d\ns_add_u32 s%d, s%d, %d' % (sT2, sG, sT1, sR, sT2, sT2, sT1, sT2, sT2, WS_F2))
    put_flag(g, sT2, 'sc1')
    g.stamp(6)
    g.vm = Cnt(63); g.lg = Cnt(15)
    tr_addr(g, 2, 8, 6)
    for o in range(4):
        g('s_xor_b32 s%d, s%d, %d\ns_lshl_b32 s%d, s%d, 13\nv_add_u32 v%d, s%d, v2' % (sT0, sW, o, sT0, sT0, 120 + o, sT0))
    for o in range(4): g('v_add_u32 v%d, s%d, v%d' % (8 + o, sM0, 120 + o))
    for j in range(32):
        for t in range(2):
            g('ds_read_b64_tr_b16 %s, v%d offset:%d' % (a(4 * j + 2 * t, 2), 8 + (j >> 3), 1024 * (j & 7) + 512 * t))
        if j % 4 == 3: g('s_waitcnt lgkmcnt(4)')
    g('s_waitcnt lgkmcnt(0)')
    g('s_mul_i32 s%d, s%d, %d\ns_lshl_b32 s%d, s%d, 13\ns_add_u32 s%d, s%d, s%d\ns_lshl_b32 s%d, s%d, 11\ns_add_u32 s%d, s%d, s%d\ns_add_u32 s%d, s%d, 0x%x'
      % (sT3, sT, 4 * 114688, sT0, sFT, sT3, sT3, sT0, sT0, sW, sT3, sT3, sT0, sT3, sT3, WS_HF))
    if loc:
        g('v_lshrrev_b32 v8, 4, v1\ns_mov_b32 s%d, 114688\nv_mul_lo_u32 v8, v8, s%d\nv_and_b32 v9, 15, v1\nv_lshl_add_u32 v8, v9, 7, v8' % (sT0, sT0))
        g.vmem('buffer_load_dword v10, v8, %s, s%d offen' % (srd(SWS), sT3))
        g('v_and_b32 v8, 3, v1\nv_lshlrev_b32 v8, 7, v8\ns_lshl_b32 s%d, s%d, 9\ns_add_u32 s%d, s%d, 0x%x' % (sT0, sT, sT0, sT0, WS_RINV))
        g.vmem('buffer_load_dword v10, v8, %s, s%d offen' % (srd(SWS), sT0))
    g('s_mov_b32 s%d, %d\ns_mov_b32 s%d, %d\ns_mov_b32 s%d, %d' % (sO1, 7168, sO2, 2 * 7168, sO3, 3 * 7168))
    g('v_lshrrev_b32 v8, 3, v1\nv_lshlrev_b32 v8, 10, v8\nv_and_b32 v9, 7, v1\nv_lshl_add_u32 v8, v9, 4, v8')
    g('s_mul_i32 s%d, s%d, %d\ns_and_b32 s%d, s%d, 7\ns_lshl_b32 s%d, s%d, 7\ns_add_u32 s%d, s%d, s%d\nv_add_u32 v3, s%d, v8' % (sT0, sW, 448 * 1024, sT1, sR, sT1, sT1, sT0, sT0, sT1, sT0))
    tr_addr(g, 4, 8, 7)
    g('v_add_u32 v4, s%d, v4' % sM0)
    for rnd in range(2):
        g('s_mov_b32 m0, s%d' % sM0)
        if rnd: g('v_add_u32 v3, %d, v3' % 32768)
        else: g('s_nop 0')
        for s in dma4(g, 3, SW2, 28, 32768): g.vmem(s, 'w2')
        if rnd == 0:
            for i in range(4): g('v_mov_b32 v%d, 0x3f803f80' % (48 + i))
            g('s_nop 1')
            for j in range(32): g('v_mfma_f32_32x32x16_bf16 v[80:95], %s, v[48:51], %s' % (a(4 * j, 4), '0' if j == 0 else 'v[80:95]'))
        g('s_waitcnt vmcnt(0)')
        for ks in range(14):
            for db in range(2):
                for t in range(2):
                    g('ds_read_b64_tr_b16 %s, v4 offset:%d' % (w2half(28 * rnd + 2 * ks + db, t), 2048 * ks + 1024 * t + 64 * db))
            if ks % 2 == 1: g('s_waitcnt lgkmcnt(4)')
        g('s_waitcnt lgkmcnt(0)')
    g.stamp(7)
    L = 'Lf2' + sfx; D = 'Lf2d' + sfx
    g('s_mov_b32 s%d, %d\ns_mov_b32 s%d, 0' % (sT0, WS_F2, sSPIN))
    g.label(L)
    g('buffer_load_dwordx4 v[8:11], v5, %s, s%d offen sc1' % (srd(SWS), sT0))
    g('s_add_u32 s%d, s%d, 1\ns_cmp_gt_u32 s%d, %d\ns_cbranch_scc1 %s' % (sSPIN, sSPIN, sSPIN, SPIN_MAX, D))
    g('s_waitcnt vmcnt(0)')
    g('v_xor_b32 v8, s%d, v8\nv_xor_b32 v9, s%d, v9\nv_xor_b32 v10, s%d, v10\nv_xor_b32 v11, s%d, v11' % (sTAG, sTAG, sTAG, sTAG))
    g('v_or_b32 v8, v8, v9\nv_or3_b32 v8, v8, v10, v11\nv_cmp_ne_u32 vcc, 0, v8\ns_cbranch_vccnz %s' % L)
    g.label(D)
    g('s_waitcnt vmcnt(0)\ns_barrier')
    g.stamp(8)
    g('s_cmp_ge_u32 s%d, 28\ns_cbranch_scc1 Lg2%s' % (sR, sfx))
    g.vm = Cnt(63); g.lg = Cnt(15)
    g('s_lshl_b32 s%d, s%d, 17\ns_lshl_b32 s%d, s%d, 13\ns_add_u32 s%d, s%d, s%d\ns_add_u32 s%d, s%d, 0x%x' % (sT0, sT, sT1, sW, sT0, sT0, sT1, sT0, sT0, WS_HT))
    g('s_mov_b32 m0, s%d\ns_nop 0' % sT1)
    for b in range(4):
        for hh in range(2):
            for i in range(4): g.vmem('buffer_load_dwordx4 v5, %s, s%d offen offset:%d sc1 lds' % (srd(SWS), sT0, 1024 * i), 'h%d' % b)
            if not (b == 3 and hh == 1):
                st = 4096 if hh == 0 else 32768 - 4096
                g('s_add_u32 m0, m0, %d\ns_add_u32 s%d, s%d, %d' % (st, sT0, sT0, st))
    g('v_and_b32 v8, 31, v1\nv_lshlrev_b32 v7, 5, v8\nv_add_u32 v7, %d, v7\ns_lshl_b32 s%d, s%d, 3\nv_add_u32 v6, s%d, v7' % (LX, sT1, sW, sT1))
    g('v_lshlrev_b32 v3, 2, v8\nv_mov_b32 v4, 0x3f803f80')
    g('s_lshl_b32 s%d, s%d, 9\ns_add_u32 s%d, s%d, 0x%x' % (sT4, sT, sT4, sT4, WS_RINV))
    g.wvm('h0')
    g('s_barrier')
    g.stamp(9)
    AH = 5
    def rdh(b, j):
        return ['ds_read_b64_tr_b16 %s, v%d offset:%d' % (v(48 + 4 * (j % 8) + 2 * t, 2), 120 + (j >> 3), 32768 * (b & 1) + 1024 * (j & 7) + 512 * t) for t in range(2)]
    def epilogue(b):
        A = 16 + 16 * (b & 1); f = []
        for i in range(16): f.append('v_fmac_f32 v%d, v104, v%d' % (A + i, 80 + i))
        for i in range(8): f.append('v_cvt_pk_bf16_f32 v%d, v%d, v%d' % (96 + i, A + 2 * i, A + 2 * i + 1))
        for i in range(8): f.append('v_pk_max_i16 v%d, v%d, 0' % (96 + i, 96 + i))
        f.append('buffer_store_dwordx4 v[96:99], v5, %s, s%d offen %s' % (srd(SWS), sT3, fl))
        f.append('buffer_store_dwordx4 v[100:103], v5, %s, s%d offen offset:1024 %s\ns_add_u32 s%d, s%d, 114688' % (srd(SWS), sT3, fl, sT3, sT3))
        return f
    def statfin(b):
        f = ['v_pk_add_f32 v[108:109], v[108:109], v[110:111]', 'v_pk_add_f32 v[112:113], v[112:113], v[114:115]',
             'v_pk_add_f32 v[108:109], v[108:109], v[112:113]',
             'v_mul_f32 v108, 0x3b000000, v108', 'v_mul_f32 v109, 0x3b000000, v109',
             'v_fma_f32 v109, -v108, v108, v109', 'v_max_f32 v109, 0, v109',
             'v_cvt_pk_bf16_f32 v108, v108, v109', 'v_and_b32 v109, 0xffff0000, v108', 'v_lshlrev_b32 v105, 16, v108',
             'v_add_f32 v109, 0x3727c5ac, v109', 'v_cvt_pk_bf16_f32 v109, v109, v109', 'v_lshlrev_b32 v109, 16, v109',
             'v_sqrt_f32 v109, v109', 'v_xor_b32 v105, 0x80000000, v105', 'v_cvt_pk_bf16_f32 v109, v109, v109', 'v_lshlrev_b32 v109, 16, v109',
             'v_rcp_f32 v109, v109', 's_nop 0',
             'buffer_store_dword v109, v3, %s, s%d offen offset:%d %s' % (srd(SWS), sT4, 128 * b, fl)]
        return f
    for j in range(AH):
        for s in rdh(0, j): g(s)
    for b in range(4):
        A = v(16 + 16 * (b & 1), 16)
        seq = []
        extra = {}
        for j in range(32):
            pass
        ep = epilogue(b - 1) if b > 0 else []
        q = []
        if b == 0: q = [('f', 0, j) for j in range(AH) for _ in range(2)]
        else: q = g._q
        lines = []
        fill_slots = {j: [] for j in range(32)}
        for j in range(8):
            R = 48 + 4 * (j % 8)
            for i in range(4):
                fill_slots[j].append('v_dot2c_f32_bf16 v106, v%d, v4' % (R + i))
                fill_slots[j].append('v_dot2c_f32_bf16 v107, v%d, v%d' % (R + i, R + i))
        k = 0
        for j in range(8, 22):
            tgt = (len(ep) * (j - 7) + 13) // 14
            while k < tgt: fill_slots[j].append(ep[k]); k += 1
        for j in range(32):
            cand = [i for i, x in enumerate(q) if x == ('f', b, j)]
            if cand:
                lines.append('s_waitcnt lgkmcnt(%d)' % (len(q) - 1 - cand[-1]))
                q = q[cand[-1] + 1:]
            if j == 0: lines.append('v_mov_b32 v106, 0\nv_mov_b32 v107, 0')
            lines.append('v_mfma_f32_32x32x16_bf16 %s, %s, %s, %s' % (A, a(4 * j, 4), v(48 + 4 * (j % 8), 4), '0' if j == 0 else A))
            lines += fill_slots[j]
            for s in fill_slots[j]:
                if s.startswith('buffer_store'): g.vm.issue()
            if j == 9:
                lines.append('v_mov_b32 v108, v106\nv_mov_b32 v109, v107\ns_nop 1\nv_permlane32_swap_b32 v106, v108\nv_permlane32_swap_b32 v107, v109\ns_nop 1\nv_pk_add_f32 v[106:107], v[106:107], v[108:109]')
                lines.append('ds_write_b64 v6, v[106:107] offset:%d' % (1024 * b)); q.append(('w', b, 0))
            if j == 23:
                w = 's_waitcnt lgkmcnt(%d)' % (len(q) - 1 - max([i for i, x in enumerate(q) if x[0] == 'w'] + [-1])) if any(x[0] == 'w' for x in q) else ''
                if b < 3: w += '\ns_waitcnt vmcnt(%d)' % g.vm.need('h%d' % (b + 1))
                lines.append(w + '\ns_barrier')
                lines.append('ds_read_b128 v[108:111], v7 offset:%d\nds_read_b128 v[112:115], v7 offset:%d' % (1024 * b, 1024 * b + 16))
                q += [('s', b, 0), ('s', b, 1)]
            if j == 26:
                idx = max(i for i, x in enumerate(q) if x[0] == 's') if any(x[0] == 's' for x in q) else -1
                if idx >= 0:
                    lines.append('s_waitcnt lgkmcnt(%d)' % (len(q) - 1 - idx)); q = q[idx + 1:]
            if 26 <= j <= 30:
                sf = statfin(b)
                part = sf[4 * (j - 26): 4 * (j - 25)]
                lines += part
                for s in part:
                    if s.startswith('buffer_store'): g.vm.issue()
            if j == 31: lines.append('v_mov_b32 v104, v105')
            jj = j + AH
            if jj < 32:
                lines += rdh(b, jj); q += [('f', b, jj)] * 2
            elif b < 3:
                if jj == 32 and b == 1:
                    lines.append('\n'.join('v_add_u32 v%d, 0x10000, v%d' % (116 + o, 120 + o) for o in range(4)))
                bb = b + 1
                rr = rdh(bb, jj - 32)
                if b == 1: rr = [s.replace('v120', 'v116') for s in rr]
                lines += rr; q += [('f', bb, jj - 32)] * 2
            if j == 31 and b == 1:
                lines.append('\n'.join('v_mov_b32 v%d, v%d' % (120 + o, 116 + o) for o in range(4)))
        g._q = q
        for s in lines: g(s)
    g('s_nop 7\ns_nop 3')
    for s in epilogue(3): g(s)
    g('s_waitcnt vmcnt(0)\ns_barrier')
    g('s_lshl_b32 s%d, s%d, 7\ns_lshl_b32 s%d, s%d, 2\ns_add_u32 s%d, s%d, s%d\ns_add_u32 s%d, s%d, %d' % (sT2, sG, sT1, sR, sT2, sT2, sT1, sT2, sT2, WS_F3L if loc else WS_F3G))
    put_flag(g, sT2, fl)
    g.label('Lg2' + sfx)
    g.stamp(10)
    g.vm = Cnt(63); g.lg = Cnt(15)
    g('s_lshr_b32 s%d, s%d, 3\ns_lshl_b32 s%d, s%d, 1\ns_lshl_b32 s%d, s%d, 3\ns_add_u32 s%d, s%d, s%d' % (sT0, sR, sT0, sT0, sT1, sG, sT, sT0, sT1))
    g('s_and_b32 s%d, s%d, 7' % (sFT, sR))
    g('s_lshl_b32 s%d, s%d, 15\ns_lshl_b32 s%d, s%d, 12\ns_add_u32 s%d, s%d, s%d\ns_lshl_b32 s%d, s%d, 10\ns_add_u32 s%d, s%d, s%d\ns_add_u32 s%d, s%d, 0x%x'
      % (sT0, sT, sT1, sFT, sT0, sT0, sT1, sT1, sW, sT0, sT0, sT1, sT0, sT0, WS_HT))
    g('s_add_u32 m0, s%d, %d\ns_nop 0' % (sT1, LX + 4096))
    g('buffer_load_dwordx4 v5, %s, s%d offen sc1 lds' % (srd(SWS), sT0))
    g('s_add_u32 m0, m0, 4096\ns_add_u32 s%d, s%d, 0x8000' % (sT0, sT0))
    g('buffer_load_dwordx4 v5, %s, s%d offen sc1 lds' % (srd(SWS), sT0))
    g('v_lshrrev_b32 v8, 3, v1\ns_lshl_b32 s%d, s%d, 3\nv_add_u32 v8, s%d, v8\nv_and_b32 v9, 7, v1' % (sT1, sW, sT1))
    g('v_lshlrev_b32 v2, 9, v9\nv_lshl_add_u32 v2, v8, 1, v2\nv_add_u32 v2, %d, v2' % (LX + 4096))
    g('v_lshlrev_b32 v3, 10, v8\nv_lshl_add_u32 v3, v9, 4, v3')
    g('v_lshlrev_b32 v4, 2, v8')
    g('v_lshlrev_b32 v6, 1, v9\nv_and_b32 v10, 7, v8\nv_xor_b32 v6, v6, v10\nv_lshlrev_b32 v6, 4, v6\nv_lshl_add_u32 v6, v8, 8, v6\nv_xor_b32 v7, 16, v6')
    g('v_and_b32 v8, 31, v1\nv_lshrrev_b32 v9, 5, v1\nv_and_b32 v10, 7, v1\nv_xor_b32 v9, v9, v10\ns_lshl_b32 s%d, s%d, 14\nv_lshlrev_b32 v8, 8, v8\nv_add_u32 v8, s%d, v8' % (sT1, sW, sT1))
    for blk in range(4): g('v_xor_b32 v10, %d, v9\nv_lshl_add_u32 v%d, v10, 4, v8' % (2 * blk, 116 + blk))
    g('s_waitcnt vmcnt(0)\ns_barrier')
    for it in range(2):
        for j in range(8): g('ds_read_u16 v%d, v2 offset:%d' % (80 + 8 * it + j, 4096 * it + 64 * j))
        g('s_waitcnt lgkmcnt(0)')
    for j in range(16): g('v_lshlrev_b32 v%d, 16, v%d' % (80 + j, 80 + j))
    g('s_lshr_b32 s%d, s%d, 4\ns_mul_i32 s%d, s%d, 14\ns_lshl_b32 s%d, 0x3fff, s%d' % (sT0, sR, sT0, sT0, sNEED, sT0))
    poll_pair(g, WS_F3L, WS_F3G, sNEED, 8, 9)
    g.stamp(11)
    g('s_mul_i32 s%d, s%d, 114688\ns_mul_i32 s%d, s%d, %d\ns_add_u32 s%d, s%d, s%d\ns_add_u32 s%d, s%d, 0x%x' % (sT0, sT, sT1, sW, 28 * 1024, sT0, sT0, sT1, sT0, sT0, WS_HF))
    def hload(i):
        rb, ks = divmod(i, 28)
        pre = ''
        if i and ks == 0: pre = 's_add_u32 s%d, s%d, %d\n' % (sT0, sT0, 114688 - 24 * 1024)
        elif i and ks % 4 == 0: pre = 's_add_u32 s%d, s%d, 4096\n' % (sT0, sT0)
        return pre + 'buffer_load_dwordx4 %s, v5, %s, s%d offen offset:%d sc1' % (a(4 * (i % 32), 4), srd(SWS), sT0, 1024 * (ks % 4))
    for i in range(32): g.vmem(hload(i), 'H%d' % i)
    g('s_lshl_b32 s%d, s%d, 7\ns_add_u32 s%d, s%d, 0x%x' % (sT1, sT, sT1, sT1, WS_RINV))
    g.vmem('buffer_load_dword v96, v4, %s, s%d offen sc1' % (srd(SWS), sT1))
    g.vmem('buffer_load_dword v97, v4, %s, s%d offen offset:128 sc1' % (srd(SWS), sT1), 'rinv')
    def pwrite(rb):
        return ['ds_write_b128 v%d, %s offset:%d' % (116 + blk, v(16 + 32 * rb + 16 * db + 4 * blk, 4), 8192 * rb + 128 * db) for db in range(2) for blk in range(4)]
    for i in range(56):
        rb, ks = divmod(i, 28)
        g.wvm('H%d' % i)
        for db in range(2):
            A = v(16 + 32 * rb + 16 * db, 16)
            g('v_mfma_f32_32x32x16_bf16 %s, %s, %s, %s' % (A, w2reg(2 * ks + db), a(4 * (i % 32), 4), '0' if ks == 0 else A))
        if i + 32 < 56: g.vmem(hload(i + 32), 'H%d' % (i + 32))
        if rb == 1 and 6 <= ks < 14: g(pwrite(0)[ks - 6])
    g.stamp(12)
    g('s_nop 7\ns_nop 3')
    for s in pwrite(1): g(s)
    g('s_waitcnt lgkmcnt(0)\ns_barrier')
    g('s_lshl_b32 s%d, s%d, 15\ns_lshl_b32 s%d, s%d, 7\ns_add_u32 s%d, s%d, s%d\ns_add_u32 s%d, s%d, 0x8000' % (sT0, sT, sT1, sFT, sT0, sT0, sT1, sT1, sT0))
    for it in range(2):
        for ww in range(4):
            g('ds_read_b128 %s, v6 offset:%d' % (v(16 + 32 * it + 8 * ww, 4), 16384 * ww + 8192 * it))
            g('ds_read_b128 %s, v7 offset:%d' % (v(20 + 32 * it + 8 * ww, 4), 16384 * ww + 8192 * it))
        if it == 0: g('s_waitcnt vmcnt(0) lgkmcnt(7)')
    for it in range(2):
        b = 16 + 32 * it
        g('s_waitcnt lgkmcnt(%d)' % (8 - 8 * it))
        for j in range(0, 8, 2):
            g('v_pk_add_f32 %s, %s, %s' % (v(b + j, 2), v(b + j, 2), v(b + 8 + j, 2)))
            g('v_pk_add_f32 %s, %s, %s' % (v(b + 16 + j, 2), v(b + 16 + j, 2), v(b + 24 + j, 2)))
        for j in range(0, 8, 2): g('v_pk_add_f32 %s, %s, %s' % (v(b + j, 2), v(b + j, 2), v(b + 16 + j, 2)))
        for j in range(8): g('v_fmac_f32 v%d, v%d, v%d' % (80 + 8 * it + j, 96 + it, b + j))
        for j in range(4): g('v_cvt_pk_bf16_f32 v%d, v%d, v%d' % (b + j, 80 + 8 * it + 2 * j, 81 + 8 * it + 2 * j))
        g('buffer_store_dwordx4 %s, v3, %s, s%d offen' % (v(b, 4), srd(SOUT), sT0 if it == 0 else sT1))
    g('s_branch L_fin')

def finish(g):
    g.label('L_fin')
    g('s_cmp_lg_u32 s2, 0\ns_cbranch_scc1 L_noep\ns_mov_b32 s%d, %d' % (sT2, WS_EPOCH))
    put_flag(g, sT2, 'sc1')
    g.label('L_noep')
    if g.diag:
        g('s_waitcnt vmcnt(0)')
        g.stamp(13)
        g('s_mov_b32 s%d, s%d' % (SSTAMP + 15, sXCC))
        g('s_cmp_lg_u32 s%d, 0\ns_cbranch_scc1 L_exit' % sW)
        for i in range(16): g('v_mov_b32 v%d, s%d' % (16 + i, SSTAMP + i))
        g('s_lshl_b32 s%d, s2, 6\ns_add_u32 s%d, s%d, 0x%x\nv_mov_b32 v8, 0\ns_mov_b64 exec, 1' % (sT0, sT0, sT0, WS_STAMP))
        for i in range(4): g('buffer_store_dwordx4 %s, v8, %s, s%d offen offset:%d' % (v(16 + 4 * i, 4), srd(SWS), sT0, 16 * i))
    g.label('L_exit')
    g('s_endpgm')

def build(diag=False, force=None):
    g = G(diag)
    prologue(g)
    stats1(g)
    aloads(g)
    p0_compute(g)
    g.stamp(1)
    if g.diag: g('s_mov_b32 s%d, 0' % (SSTAMP + 14))
    vm0 = g.vm
    if force == 'glob': g('s_waitcnt vmcnt(0)\ns_branch L_glob')
    else: census(g)
    g.label('L_loc')
    if g.diag: g('s_mov_b32 s%d, 1' % (SSTAMP + 14))
    body(g, True)
    finish(g)
    g.label('L_mainend')
    g.vm = vm0
    g.label('L_glob')
    body(g, False)
    hdr = open('cdna_kernels/%s.s.ref' % NAME).read().split('; Override launch')[0]
    s = hdr + '; @launch grid=(256,1,1) block=(256,1,1) lds=%d\n' % LDS_BYTES
    s += '.amdgcn_target "amdgcn-amd-amdhsa--gfx950"\n.text\n.globl %s_kernel\n.p2align 8\n.type %s_kernel,@function\n%s_kernel:\n' % (NAME, NAME, NAME)
    s += '\n'.join(g.l) + '\n'
    s += '.section .rodata,"a"\n.p2align 6\n.amdhsa_kernel %s_kernel\n' % NAME
    s += ('  .amdhsa_next_free_vgpr 512\n  .amdhsa_next_free_sgpr 100\n  .amdhsa_accum_offset 256\n  .amdhsa_group_segment_fixed_size 0\n'
          '  .amdhsa_kernarg_size 96\n  .amdhsa_user_sgpr_count 2\n  .amdhsa_user_sgpr_kernarg_segment_ptr 1\n  .amdhsa_system_sgpr_workgroup_id_x 1\n.end_amdhsa_kernel\n')
    return s

if __name__ == '__main__':
    open('cdna_kernels/%s.s' % NAME, 'w').write(build())
    open('diag.s', 'w').write(build(diag=True))
    open('glob.s', 'w').write(build(diag=True, force='glob'))
```

```python
import sys
NAME = 'sequential_preLN__ssm_conv_h3__dense_activation_relu__prompt'

WS_EPOCH = 0x0
WS_F1L, WS_F1G = 0x400, 0x800
WS_F2 = 0x1000
WS_F3L, WS_F3G = 0x1800, 0x1C00
WS_STAMP = 0x4000
WS_FQ = 0x2000
WS_F4 = 0x8000
WS_HT = 0x100000
WS_XB = 0x400000
WS_GRP = 0x800000
GQQ, GUR, GRI = 0, 0x80000, 0xE0000
WS_BYTES = 0x1000000
TAGC = 0x9E3779B9
LX = 131072
LDS_BYTES = 163840
LIMG, IMGP = LX + 9216, 2112
def ssm_blk(b): return (b >> 1) * 32768 + (b & 1) * 16384 + 8192 + 64
SSMA = (0, 40, 136, 168)

class Cnt:
    def __init__(self, mx): self.n = 0; self.tags = {}; self.mx = mx
    def issue(self, tag=None):
        self.n += 1
        if tag is not None: self.tags[tag] = self.n
    def need(self, tag): return min(self.mx, self.n - self.tags[tag])

class G:
    def __init__(self, diag=False, zoom=None):
        self.zoom = zoom
        self.l = []; self.uid = 0; self.diag = diag; self.clk = 's_memtime' if diag == 'cyc' else 's_memrealtime'
        self.vm = Cnt(63); self.lg = Cnt(15)
    def __call__(self, s):
        for x in s.strip('\n').split('\n'):
            x = x.strip()
            if x: self.l.append('    ' + x)
    def label(self, n): self.l.append(n + ':')
    def new(self, p='L'):
        self.uid += 1; return '%s%d' % (p, self.uid)
    def vmem(self, s, tag=None): self(s); self.vm.issue(tag)
    def lds(self, s, tag=None): self(s); self.lg.issue(tag)
    def wvm(self, tag): self('s_waitcnt vmcnt(%d)' % self.vm.need(tag))
    def wlg(self, tag): self('s_waitcnt lgkmcnt(%d)' % self.lg.need(tag))
    def z(self, name):
        if self.zoom and name in self.zoom:
            i = self.zoom.index(name)
            return 's_memtime s[%d:%d]' % (SSTAMP + 2 * i, SSTAMP + 2 * i + 1)
        return ''
    def zw(self, name):
        x = self.z(name)
        if x: self('s_waitcnt vmcnt(0)\n' + x)
    def stamp(self, i):
        if self.zoom: self(self.z('s%d' % i))
        elif self.diag:
            self('%s s[%d:%d]\ns_waitcnt lgkmcnt(0)\ns_mov_b32 s%d, s%d' % (self.clk, 100, 101, SSTAMP + i, 100))

SQ, SK, SV, SSH, SSSM, SW1, SW2, SOUT, SWS, SDBG = 4, 8, 12, 16, 20, 24, 28, 32, 36, 40
SDP = 44
sG, sR, sW, sTAG, sD, sXCC = 46, 47, 48, 49, 50, 51
sT0, sT1, sT2, sT3, sT4, sT5 = 52, 53, 54, 55, 56, 57
sO1, sO2, sO3 = 58, 59, 60
sFLG = 61
sSPIN = 62
sSH = 44
sFT, sT = 63, 64
sM0 = 65
sX, sCH = 66, 67
sMK = 68
sPC = 70
sKap = 72
sNEED = 73
sDV, sDM = 74, 75
sP = 92
sURB, sQQ, sQ3, sTW1, sTW2, sQ4, sFL, sPH = 92, 93, 94, 95, 96, 97, 98, 99
SW1T = 4
SSTAMP = 76

def v(i, n=1): return 'v%d' % i if n == 1 else 'v[%d:%d]' % (i, i + n - 1)
def a(i, n=1): return 'a%d' % i if n == 1 else 'a[%d:%d]' % (i, i + n - 1)
def srd(i): return 's[%d:%d]' % (i, i + 3)

def merge(main, fill, first=0, last=None):
    if last is None: last = len(main) - 1
    n = last - first + 1
    out = []; fi = 0
    for i, m in enumerate(main):
        out.append(m)
        if first <= i <= last:
            tgt = (len(fill) * (i - first + 1) + n - 1) // n
            while fi < tgt: out.append(fill[fi]); fi += 1
    out += fill[fi:]
    return out

def round_bf(g, r):
    g('v_cvt_pk_bf16_f32 %s, %s, %s\nv_lshlrev_b32 %s, 16, %s' % (v(r), v(r), v(r), v(r), v(r)))

def allreduce(g, regs, tmp):
    for ctl in ('quad_perm:[1,0,3,2]', 'quad_perm:[2,3,0,1]', 'row_half_mirror', 'row_mirror'):
        g('s_nop 1')
        for r in regs: g('v_add_f32_dpp %s, %s, %s %s row_mask:0xf bank_mask:0xf' % (v(r), v(r), v(r), ctl))
    for op in ('v_permlane16_swap_b32', 'v_permlane32_swap_b32'):
        for r, t in zip(regs, tmp): g('v_mov_b32 %s, %s' % (v(t), v(r)))
        g('s_nop 1')
        for r, t in zip(regs, tmp): g('%s %s, %s' % (op, v(r), v(t)))
        g('s_nop 1')
        for r, t in zip(regs, tmp): g('v_add_f32 %s, %s, %s' % (v(r), v(r), v(t)))

SPIN_MAX = 1 << 20
CODE_BYTES = 23808
SSMP = 4352
SSMC = 64 + 4 * SSMP + 192
OPT = dict(urtouch='nt', w1first=0, w1pace=(110, 130), w1conv=0, w1ahead=8, nh0=12, htouch='w3', htfl='', nH=12, w1fl='', urfl='', Hfl='', cq1=16, cq2=46, cq3=124, cf=100, ct1=-3, ct2=48, pw=(1, 0), mj=(1, 6), e0=10, e1=28, early1=1, qqst='', htst='', xbst='', ost='', dense=0,  cw=34, cp0=24, w1warm=0, split1=0, poll0=1, cp2=1, csn=6, ct1b=-1)

def poll_pair(g, offL, offG, need_sgpr, vaddr, vtmp):
    L = g.new('Lp'); D = g.new('Lpd')
    g('s_lshl_b32 s%d, s%d, 7' % (sT0, sG))
    g('v_and_b32 %s, 31, v1\nv_lshlrev_b32 %s, 2, %s' % (v(vaddr), v(vaddr), v(vaddr)))
    g('v_mov_b32 %s, %d\nv_cmp_lt_u32 vcc, 31, v1\ns_nop 1\nv_cndmask_b32 %s, %d, %s, vcc' % (v(vtmp), offG - offL, v(vtmp), 0, v(vtmp)))
    g('v_add_u32 %s, %s, %s\ns_add_u32 s%d, s%d, %d\ns_mov_b32 s%d, 0' % (v(vaddr), v(vaddr), v(vtmp), sT0, sT0, offL, sSPIN))
    g.label(L)
    g('buffer_load_dword %s, %s, %s, s%d offen sc1' % (v(vtmp), v(vaddr), srd(SWS), sT0))
    g('s_add_u32 s%d, s%d, 1\ns_cmp_gt_u32 s%d, %d\ns_cbranch_scc1 %s' % (sSPIN, sSPIN, sSPIN, SPIN_MAX, D))
    g('s_waitcnt vmcnt(0)')
    g('v_cmp_eq_u32 vcc, s%d, %s' % (sTAG, v(vtmp)))
    g('s_nop 0\ns_or_b32 s%d, vcc_lo, vcc_hi\ns_and_b32 s%d, s%d, s%d\ns_cmp_lg_u32 s%d, s%d\ns_cbranch_scc1 %s' % (sT1, sT1, sT1, need_sgpr, sT1, need_sgpr, L))
    g.label(D)
    g('s_waitcnt vmcnt(0)')

def put_flag(g, off_sgpr, flavour, second=None):
    L = g.new('Lf')
    g('s_cmp_lg_u32 s%d, 0\ns_cbranch_scc1 %s' % (sW, L))
    g('v_mov_b32 v14, s%d\nv_mov_b32 v15, 0\ns_mov_b64 exec, 1' % sTAG)
    g('buffer_store_dword v14, v15, %s, s%d offen %s' % (srd(SWS), off_sgpr, flavour))
    if second is not None: g('buffer_store_dword v14, v15, %s, s%d offen sc1' % (srd(SWS), second))
    g('s_mov_b64 exec, -1')
    g.label(L)

def prologue(g):
    g('s_cmp_ge_u32 s2, 256\ns_cbranch_scc1 L_exit')
    g('s_getpc_b64 s[%d:%d]\ns_lshr_b32 s%d, s2, 3\ns_lshl_b32 s%d, s%d, 3\nv_add_u32 v2, s%d, v0\nv_cmp_gt_u32 vcc, %d, v0' % (sPC, sPC + 1, sR, sT0, sR, sT0, OPT['cp0']))
    for (s, off) in ((SQ, 0), (SK, 8), (SV, 16), (SSH, 24), (SSSM, 32), (SDP, 40), (SW1, 56), (SW2, 64), (SOUT, 72), (SDBG, 80), (SWS, 88)):
        g('s_load_dwordx2 s[%d:%d], s[0:1], %d' % (s, s + 1, off))
    g('s_mov_b64 exec, 0x%x\nv_cndmask_b32 v2, v2, v0, vcc\nv_lshlrev_b32 v2, 7, v2\nv_min_u32 v2, %d, v2\nv_cmp_gt_u32 vcc, 64, v0\ns_and_b64 exec, exec, vcc\ns_cbranch_execz L_nopf' % ((1 << (OPT['cp0'] + 8)) - 1, CODE_BYTES))
    g('global_load_dword v10, v2, s[%d:%d]' % (sPC, sPC + 1))
    g.label('L_nopf')
    g('s_mov_b64 exec, -1')
    if g.diag: g(('s_memrealtime' if g.zoom else g.clk) + ' s[100:101]')
    for (s, n) in ((SQ, 0x200000), (SK, 0x200000), (SV, 0x200000), (SSH, 4096), (SSSM, 4096), (SW1, 512 * 3584), (SW2, 1792 * 1024),
                   (SOUT, 0x200000), (SWS, WS_BYTES), (SDBG, 256)):
        g('s_mov_b32 s%d, 0x%x\ns_mov_b32 s%d, 0x20000' % (s + 2, n, s + 3))
    g('s_and_b32 s%d, s2, 7\ns_lshr_b32 s%d, s2, 3' % (sG, sR))
    g('v_and_b32 v1, 63, v0\nv_lshrrev_b32 v2, 6, v0\ns_getreg_b32 s%d, hwreg(HW_REG_XCC_ID)\nv_readfirstlane_b32 s%d, v2' % (sXCC, sW))
    g('v_lshlrev_b32 v5, 4, v1')
    g('s_lshl_b32 s%d, s%d, 5\ns_add_u32 s%d, s%d, s%d\ns_lshl_b32 s%d, s%d, 2\ns_add_u32 s%d, s%d, s%d\ns_lshl_b32 s%d, s%d, 11'
      % (sT2, sG, sT2, sT2, sR, sT3, sT2, sT3, sT3, sW, sT3, sT3))
    g('v_lshrrev_b32 v6, 3, v1\nv_lshlrev_b32 v6, 10, v6\nv_and_b32 v7, 7, v1\nv_lshl_add_u32 v6, v7, 4, v6')
    g('s_lshl_b32 s%d, s%d, 16\ns_lshl_b32 s%d, s%d, 7\ns_add_u32 s%d, s%d, s%d\ns_lshl_b32 s%d, s%d, 14\ns_add_u32 s%d, s%d, s%d\ns_add_u32 s%d, s%d, 7168'
      % (sT0, sR, sT1, sG, sT0, sT0, sT1, sT4, sW, sT4, sT4, sT0, sT5, sT4))
    g('v_add_u32 v7, s%d, v6\nv_subrev_u32 v7, 3072, v7' % sT4)
    g('s_lshl_b32 s%d, s%d, 13\ns_add_u32 s%d, s%d, %d\ns_lshl_b32 s%d, s%d, 15\ns_mov_b32 m0, s%d' % (sT0, sW, sX, sT0, LX, sM0, sW, sM0))
    g('v_and_b32 v4, 31, v0\nv_lshlrev_b32 v4, 4, v4\ns_lshl_b32 s%d, s%d, 9\nv_add_u32 v4, s%d, v4' % (sT1, sG, sT1))
    g('s_and_b32 s%d, s%d, 15\ns_or_b32 s%d, s%d, 0x80\nv_mov_b32 v8, s%d\nv_mov_b32 v9, s%d\nv_and_b32 v3, 31, v1' % (sXCC, sXCC, sXCC, sXCC, sXCC, sT2))
    g('s_cmp_lg_u32 s%d, 0' % sW)
    g('s_waitcnt lgkmcnt(0)')
    if g.diag and not g.zoom: g('s_mov_b32 s%d, s100' % SSTAMP)
    g(g.z('s0'))
    g('s_cbranch_scc1 L_nocen\ns_mov_b64 exec, 1\nbuffer_store_byte v8, v9, %s, 0 offen\ns_mov_b64 exec, -1' % srd(SDBG))
    g.label('L_nocen')
    g.vmem('buffer_load_dwordx4 v[36:39], v5, %s, s%d offen nt' % (srd(SQ), sT3))
    g.vmem('buffer_load_dwordx4 v[40:43], v5, %s, s%d offen offset:1024 nt' % (srd(SQ), sT3), 'qrow')
    g('s_mov_b64 exec, 0xffffff')
    g.vmem('buffer_load_dwordx4 v7, %s, 0 offen nt lds' % srd(SK))
    g('s_mov_b64 exec, -1\ns_add_u32 m0, m0, 384\ns_nop 0')
    g.vmem('buffer_load_dwordx4 v6, %s, s%d offen nt lds' % (srd(SK), sT4))
    g.vmem('buffer_load_dwordx4 v6, %s, s%d offen offset:1024 nt lds' % (srd(SK), sT5))
    g('s_add_u32 m0, m0, %d\ns_lshl_b32 s%d, s%d, 5' % (4096 - 384, sT1, sG))
    g.vmem('buffer_load_dwordx4 v6, %s, s%d offen nt lds' % (srd(SV), sT4))
    g.vmem('buffer_load_dwordx4 v6, %s, s%d offen offset:1024 nt lds' % (srd(SV), sT5))
    g.vmem('buffer_load_dwordx4 v[44:47], v4, %s, 0 offen' % srd(SSH))
    g.vmem('buffer_load_ubyte v14, v3, %s, s%d offen sc1' % (srd(SDBG), sT1), 'kv')
    g('s_lshl_b32 s%d, s%d, 6\ns_lshl_b32 s%d, s%d, 1\ns_add_u32 s%d, s%d, s%d\ns_lshr_b32 s%d, s%d, 1\ns_add_u32 s%d, s%d, s%d' % (sT3, sG, sT1, sR, sT3, sT3, sT1, sT1, sW, sT3, sT3, sT1))
    g('s_lshl_b32 s%d, s%d, 16\ns_lshl_b32 s%d, s%d, 1\nv_mov_b32 v8, s%d\nv_mov_b32 v9, 0\ns_lshl_b32 s%d, s%d, 12' % (sCH, sT1, sT1, sT3, sT1, sT3, sT3))
    g('s_add_u32 s%d, s%d, s%d\ns_addc_u32 s%d, s%d, 0' % (SSSM, SSSM, sT3, SSSM + 1, SSSM + 1))
    g('s_and_b32 s%d, s%d, 1\ns_lshl_b32 s%d, s%d, 11' % (sKap, sW, sT1, sKap))
    g('s_mov_b32 s%d, s%d\nv_mov_b32 v114, v8' % (sDV, sT1))
    g('s_lshl_b32 s%d, s%d, 20\ns_sub_u32 s%d, 31, s%d\ns_lshl_b32 s%d, s%d, 7\ns_add_u32 s%d, s%d, s%d\ns_add_u32 s%d, s%d, 0x%x'
      % (sT3, sG, sT1, sR, sT1, sT1, sURB, sT3, sT1, sURB, sURB, WS_GRP + GUR))
    g('s_lshl_b32 s%d, s%d, 7\ns_lshl_b32 s%d, s%d, 2\ns_add_u32 s%d, s%d, s%d' % (sT3, sG, sT1, sR, sFLG, sT3, sT1))
    g(g.z('p_is'))
    g('s_lshl_b32 s%d, s%d, 15\ns_add_u32 s%d, s%d, s%d\nv_mov_b32 v12, 0\nv_lshlrev_b32 v11, 2, v1\nv_add_u32 v13, s%d, v11\nv_add_u32 v11, s%d, v11' % (sT1, sKap, sT1, sT1, sCH, sCH, sT1))
    g('s_mul_i32 s%d, s%d, 136\nv_add_u32 v9, s%d, v11\ns_lshl_b32 s%d, s%d, 7\nv_add_u32 v11, s%d, v11\ns_mov_b64 exec, 0xffff' % (sT1, sKap, sT1, sT1, sKap, sT1))
    g('ds_write_b32 v13, v12 offset:8192\ns_mov_b64 exec, 0xffffffff\nds_write_b32 v9, v12 offset:%d\nds_write_b32 v11, v12 offset:%d\ns_mov_b64 exec, -1' % (ssm_blk(0) + 4096, ssm_blk(1) + 40 + 4096))
    g('s_lshl_b32 s%d, s%d, 11\ns_add_u32 s%d, s%d, s%d\nv_add_u32 v111, s%d, v5' % (sT1, sKap, sT1, sT1, sCH, sT1))
    g('s_lshl_b32 s%d, s%d, 21\ns_lshl_b32 s%d, s%d, 11\ns_add_u32 s%d, s%d, s%d\ns_add_u32 s%d, s%d, 0x%x' % (sT1, sW, sT2, sT2, sQQ, sT1, sT2, sQQ, sQQ, WS_GRP + GQQ))
    g('v_lshrrev_b32 v8, 5, v1\nv_lshlrev_b32 v8, 10, v8\nv_lshl_add_u32 v8, v3, 2, v8\nv_add_u32 v108, s%d, v8\nv_add_u32 v109, 1024, v108\nv_add_u32 v110, 4096, v108' % sM0)
    g('v_mul_u32_u24 v8, 144, v3\nv_lshrrev_b32 v9, 5, v0\nv_sub_u32 v9, 7, v9\nv_lshl_add_u32 v8, v9, 4, v8\nv_add_u32 v118, %d, v8' % LX)
    g('v_bfe_u32 v8, v1, 3, 1\nv_lshlrev_b32 v8, 5, v8\nv_lshrrev_b32 v9, 4, v1\nv_add_u32 v8, v8, v9\ns_lshl_b32 s%d, s%d, 3\nv_add_u32 v8, s%d, v8' % (sT1, sW, sT1))
    g('v_mul_u32_u24 v8, 144, v8\nv_and_b32 v9, 7, v1\nv_lshl_add_u32 v8, v9, 4, v8\nv_add_u32 v119, %d, v8' % LX)
    g('v_lshrrev_b32 v8, 3, v1\ns_lshl_b32 s%d, s%d, 4\nv_add_u32 v8, s%d, v8\nv_lshlrev_b32 v120, 12, v8\nv_lshl_add_u32 v120, v9, 4, v120' % (sT1, sW, sT1))
    g('v_lshlrev_b32 v7, 15, v8\nv_lshl_add_u32 v7, v9, 4, v7\ns_lshl_b32 s%d, s%d, 17\nv_and_b32 v9, 3, v1\nv_lshrrev_b32 v4, 2, v1\nv_lshlrev_b32 v4, 11, v4\nv_lshl_add_u32 v4, v9, 4, v4\nv_add_u32 v4, s%d, v4' % (sT1, sW, sT1))
    g('v_lshrrev_b32 v11, 3, v1\nv_lshl_add_u32 v11, v11, 2, v9\nv_lshlrev_b32 v11, 6, v11\nv_bfe_u32 v15, v1, 2, 1\nv_lshl_add_u32 v11, v15, 5, v11')
    g('s_add_u32 s%d, s%d, 8192\nv_add_u32 v116, s%d, v11' % (sT1, sM0, sT1))
    g('v_lshlrev_b32 v12, 3, v8\nv_lshl_add_u32 v12, v9, 1, v12\nv_and_b32 v11, 3, v8\nv_xor_b32 v12, v12, v11\nv_lshlrev_b32 v12, 4, v12\nv_lshl_add_u32 v12, v15, 14, v12\nv_add_u32 v12, %d, v12\nv_xor_b32 v13, 16, v12' % LX)
    g('v_and_b32 v8, 15, v1\nv_lshrrev_b32 v9, 4, v1\nv_lshl_add_u32 v11, v8, 2, v9\nv_bfe_u32 v15, v1, 1, 2\nv_xor_b32 v11, v11, v15\nv_lshlrev_b32 v127, 4, v11\nv_add_u32 v127, s%d, v127' % sX)
    g('v_lshlrev_b32 v2, 6, v9\nv_lshlrev_b32 v11, 5, v8\nv_sub_u32 v2, v2, v11')
    g('s_lshl_b32 s%d, s%d, 8\ns_add_u32 s%d, s%d, s%d\ns_add_u32 s%d, s%d, 512\nv_add_u32 v2, s%d, v2' % (sT1, sKap, sT1, sT1, sX, sT1, sT1, sT1))
    g('v_and_b32 v15, 1, v9\nv_lshlrev_b32 v3, 4, v15\nv_sub_u32 v3, v3, v11')
    g('s_lshl_b32 s%d, s%d, 11\ns_sub_u32 s%d, s%d, s%d\ns_add_u32 s%d, s%d, %d\nv_add_u32 v3, s%d, v3' % (sT1, sKap, sT1, sX, sT1, sT1, sT1, 2 * (2032 - 768), sT1))
    g('v_lshl_add_u32 v15, v15, 3, v8\nv_lshlrev_b32 v126, 1, v15\nv_add_u32 v126, %d, v126' % 34)
    g('v_cmp_lt_u32 vcc, 31, v1\nv_sub_u32 v15, 15, v15\nv_mov_b32 v11, 64\nv_cndmask_b32 v126, v126, 0, vcc\nv_cndmask_b32 v117, v11, v15, vcc\nv_add_u32 v126, s%d, v126\nv_add_u32 v126, 8192, v126' % sCH)
    g('v_add_u32 v8, 1, v8\nv_and_b32 v15, 3, v8\nv_min_u32 v11, 1, v15\nv_lshlrev_b32 v121, 3, v11\nv_and_b32 v11, 1, v15\nv_mul_u32_u24 v11, %d, v11\nv_add_u32 v121, v121, v11' % (16384 + 32))
    g('v_lshrrev_b32 v11, 1, v15\nv_mul_u32_u24 v11, %d, v11\nv_add_u32 v121, v121, v11' % (32768 + 128))
    g('v_and_b32 v8, 0xfc, v8\nv_lshl_add_u32 v8, v9, 5, v8\nv_lshl_add_u32 v121, v8, 1, v121')
    g('s_lshl_b32 s%d, s%d, 8\ns_add_u32 s%d, s%d, s%d\ns_add_u32 s%d, s%d, %d\nv_add_u32 v121, s%d, v121' % (sT1, sKap, sT1, sT1, sCH, sT1, sT1, ssm_blk(0), sT1))
    g('s_mul_i32 s%d, s%d, 37\ns_lshr_b32 s%d, s%d, 8\ns_sub_u32 s%d, s%d, 28\ns_cmp_ge_u32 s%d, 28\ns_cselect_b32 s%d, s%d, s%d' % (sNEED, sR, sNEED, sNEED, sT1, sR, sR, sQ4, sT1, sNEED))
    g('s_mov_b32 s%d, s%d\ns_mov_b32 s%d, s%d\ns_mov_b32 s%d, s%d\ns_cselect_b32 s%d, 0, s%d' % (SW1T, SW1, SW1T + 1, SW1 + 1, SW1T + 2, SW1 + 2, SW1 + 2, SW1 + 2))
    g('s_mul_i32 s%d, s%d, 7\ns_sub_u32 s%d, s%d, s%d\ns_min_u32 s%d, s%d, 6\ns_and_b32 s%d, s%d, 1\ns_mul_i32 s%d, s%d, 7\ns_add_u32 s%d, s%d, s%d'
      % (sNEED, sQ4, sFL, sR, sNEED, sFL, sFL, sPH, sG, sNEED, sPH, sFT, sFL, sNEED))
    g('s_lshr_b32 s%d, s%d, 1\ns_lshl_b32 s%d, s%d, 2\ns_add_u32 s%d, s%d, s%d' % (sNEED, sG, sNEED, sNEED, sT, sNEED, sQ4))
    g('s_lshl_b32 s%d, s%d, 2\ns_add_u32 s%d, s%d, s%d\ns_mul_i32 s%d, s%d, %d\ns_mul_i32 s%d, s%d, 1792\ns_add_u32 s%d, s%d, s%d' % (sNEED, sR, sNEED, sNEED, sW, sT1, sNEED, 4 * 3584, sSPIN, sPH, sTW1, sT1, sSPIN))
    g('s_mul_i32 s%d, s%d, %d\ns_mul_i32 s%d, s%d, %d\ns_add_u32 s%d, s%d, s%d' % (sT1, sNEED, 56 * 128, sSPIN, sPH, 896 * 1024, sTW2, sT1, sSPIN))
    g('v_lshrrev_b32 v8, 4, v1\nv_mul_u32_u24 v8, 3584, v8\nv_and_b32 v9, 15, v1\nv_min_u32 v9, 13, v9\nv_lshl_add_u32 v6, v9, 7, v8')
    for i in range(2):
        g.vmem('buffer_load_dwordx4 %s, v5, %s, s%d offen offset:%d nt' % (v(184 + 8 * i, 4), srd(SSSM), sDV, 1024 * i))
        g.vmem('buffer_load_dwordx2 %s, v5, %s, s%d offen offset:%d nt' % (v(188 + 8 * i, 2), srd(SSSM), sDV, 1024 * i + 16))
    g.vmem('global_load_ushort v112, v114, s[%d:%d]' % (SDP, SDP + 1))
    g('v_mov_b32 v9, 0')
    g.vmem('buffer_load_dword v113, v9, %s, 0 offen offset:%d' % (srd(SWS), WS_EPOCH), 'ssm')
    if OPT['urtouch']:
        g('v_and_b32 v11, 15, v1\ns_lshl_b32 s%d, s%d, 4\nv_add_u32 v11, s%d, v11\nv_lshlrev_b32 v11, 12, v11' % (sT1, sW, sT1))
        g.vmem('buffer_load_dword v10, v11, %s, s%d offen %s' % (srd(SWS), sURB, OPT['urtouch'].replace('p', '')))
    g('v_and_b32 v11, 1, v1\nv_mul_u32_u24 v11, %d, v11\ns_lshl_b32 s%d, s%d, 7\ns_add_u32 s%d, s%d, %d' % (WS_F3L - WS_F1L, sT1, sG, sT1, sT1, WS_F1L))
    g.vmem('buffer_load_dword v10, v11, %s, s%d offen sc1' % (srd(SWS), sT1))
    if OPT['w1warm']:
        g('s_lshl_b32 s%d, s2, 2\ns_add_u32 s%d, s%d, s%d\ns_mul_i32 s%d, s%d, %d\nv_min_u32 v11, 13, v1\nv_lshlrev_b32 v11, 7, v11' % (sT1, sT1, sT1, sW, sT1, sT1, 14 * 128))
        g.vmem('buffer_load_dword v10, v11, %s, s%d offen' % (srd(SW1), sT1))
    g(g.z('p_i2'))

def ln1(g):
    g('s_mul_i32 s%d, s%d, %d\nv_lshlrev_b32 v8, 5, v1\nv_add_u32 v8, s%d, v8\nv_add_u32 v8, %d, v8' % (sT1, sW, 2 * IMGP, sT1, LIMG))
    g('v_bfe_u32 v9, v1, 2, 2\nv_mul_u32_u24 v9, %d, v9\nv_lshrrev_b32 v11, 4, v1\nv_lshl_add_u32 v9, v11, 5, v9\nv_and_b32 v11, 3, v1\nv_lshl_add_u32 v9, v11, 3, v9' % IMGP)
    g('s_lshl_b32 s%d, s%d, 9\ns_add_u32 s%d, s%d, %d\nv_add_u32 v115, s%d, v9\ns_mov_b32 s%d, 0x05040100\ns_mov_b32 s%d, 0x07060302' % (sT1, sW, sT1, sT1, LIMG, sT1, sT4, sT5))
    g.wvm('qrow')
    g(g.z('p_q'))
    X = 48
    for r in range(64, 68): g('v_mov_b32 v%d, 0' % r)
    g('v_mov_b32 v72, 0x3f803f80')
    for i in range(4):
        for row in range(2):
            g('v_dot2c_f32_bf16 v%d, v%d, v72\nv_dot2c_f32_bf16 v%d, v%d, v%d' % (64 + row, 36 + 4 * row + i, 66 + row, 36 + 4 * row + i, 36 + 4 * row + i))
    un = ['v_lshlrev_b32 v%d, 16, v%d\nv_and_b32 v%d, 0xffff0000, v%d' % (X + 2 * i, 36 + i, X + 2 * i + 1, 36 + i) for i in range(8)]
    g(un[0]); g(un[1])
    R = [64, 65, 66, 67]; T = [68, 69, 70, 71]
    for ctl in ('quad_perm:[1,0,3,2]', 'quad_perm:[2,3,0,1]', 'row_half_mirror', 'row_mirror'):
        for r in R: g('v_add_f32_dpp %s, %s, %s %s row_mask:0xf bank_mask:0xf' % (v(r), v(r), v(r), ctl))
    for k, op in enumerate(('v_permlane16_swap_b32', 'v_permlane32_swap_b32')):
        for r, t in zip(R, T): g('v_mov_b32 %s, %s' % (v(t), v(r)))
        g(un[2 + k])
        for r, t in zip(R, T): g('%s %s, %s' % (op, v(r), v(t)))
        for r, t in zip(R, T): g('v_add_f32 %s, %s, %s' % (v(r), v(r), v(t)))
    g(g.z('l1'))
    for r in R: g('v_mul_f32 v%d, 0x3b000000, v%d' % (r, r))
    g('v_fma_f32 v66, -v64, v64, v66\nv_fma_f32 v67, -v65, v65, v67\nv_max_f32 v66, 0, v66\nv_max_f32 v67, 0, v67')
    g('v_cvt_pk_bf16_f32 v64, v64, v66\nv_cvt_pk_bf16_f32 v65, v65, v67\nv_and_b32 v66, 0xffff0000, v64\nv_and_b32 v67, 0xffff0000, v65')
    g('v_add_f32 v66, 0x3727c5ac, v66\nv_add_f32 v67, 0x3727c5ac, v67\nv_cvt_pk_bf16_f32 v66, v66, v67\nv_lshlrev_b32 v64, 16, v64\nv_lshlrev_b32 v65, 16, v65')
    g('v_and_b32 v67, 0xffff0000, v66\nv_lshlrev_b32 v66, 16, v66\nv_sqrt_f32 v67, v67\nv_sqrt_f32 v66, v66')
    g(un[4]); g(un[5])
    g('v_cvt_pk_bf16_f32 v66, v66, v67\nv_and_b32 v67, 0xffff0000, v66\nv_lshlrev_b32 v66, 16, v66\nv_rcp_f32 v74, v67\nv_rcp_f32 v68, v66')
    g(un[6]); g(un[7])
    g('v_mov_b32 v69, v68\nv_mov_b32 v75, v74\nv_mul_f32 v66, v64, v68\nv_mul_f32 v76, v65, v74\nv_mov_b32 v67, v66\nv_mov_b32 v77, v76')
    g(g.z('l2'))
    for row in range(2):
        base = X + 8 * row
        rr, mm = ((68, 66), (74, 76))[row]
        for j in range(0, 8, 2): g('v_pk_fma_f32 %s, %s, %s, %s neg_lo:[0,0,1] neg_hi:[0,0,1]' % (v(base + j, 2), v(base + j, 2), v(rr, 2), v(mm, 2)))
        for j in range(4): g('v_cvt_pk_bf16_f32 v%d, v%d, v%d' % (70 + j, base + 2 * j, base + 2 * j + 1))
        for j in range(4):
            g('v_perm_b32 v%d, v%d, v%d, s%d\nv_perm_b32 v%d, v%d, v%d, s%d' % (base + 2 * j, 70 + j, 36 + 4 * row + j, sT4, base + 2 * j + 1, 70 + j, 36 + 4 * row + j, sT5))
        g('ds_write_b128 v8, %s offset:%d\nds_write_b128 v8, %s offset:%d' % (v(base, 4), IMGP * row, v(base + 4, 4), IMGP * row + 16))
    g(g.z('l3'))

def qq_out(g):
    g('s_add_u32 s%d, s%d, 0x100000' % (sT1, sQQ))
    for t in range(4):
        g('s_waitcnt lgkmcnt(%d)' % (6 - 2 * t))
        g.vmem('buffer_store_dwordx4 %s, v5, %s, s%d offen offset:%d sc1 %s' % (v(48 + 4 * t, 4), srd(SWS), sQQ if t < 2 else sT1, 1024 * (t & 1), OPT['qqst']), 'qqst')
    g(g.z('p_qq'))

def acopies(g):
    for i in range(2):
        d = 184 + 8 * i
        for k in range(5): g('v_alignbit_b32 v%d, v%d, v%d, 16' % (200 + k, d + k + 1, d + k))
        o = 1024 * i
        g('ds_write_b128 v111, %s offset:%d' % (v(d, 4), ssm_blk(0) + o))
        for c, r0 in ((1, 200), (2, d + 1), (3, 201)):
            base = ssm_blk(c) + SSMA[c] + o
            if r0 % 2 == 0: g('ds_write_b64 v111, %s offset:%d\nds_write_b64 v111, %s offset:%d' % (v(r0, 2), base, v(r0 + 2, 2), base + 8))
            else:
                for k in range(4): g('ds_write_b32 v111, v%d offset:%d' % (r0 + k, base + 4 * k))
        g('s_waitcnt lgkmcnt(0)')

def aread(m): return ['ds_read_b64 %s, v121 offset:%d' % (v(128 + 16 * Ql + 4 * m + 2 * i, 2), 512 * Ql + 16 * m + 8 * i) for Ql in range(8) for i in range(2)]

def abuild(g):
    for j in range(8): g('ds_read_u16 v%d, v126 offset:%d' % (104 + j, 2 * j))
    for k, x in enumerate(aread(0)):
        g(x)
        if k == 5: g('s_waitcnt lgkmcnt(6)')
        if 6 <= k < 14:
            j = k - 6
            g('v_cmp_eq_u32 vcc, %d, v117\ns_nop 1\nv_cndmask_b32 v%d, v%d, v112, vcc' % (j, 104 + j, 104 + j))
            if j & 1: g('v_lshl_or_b32 v%d, v%d, 16, v%d' % (122 + j // 2, 104 + j, 103 + j))
        if k == 13: g('s_waitcnt lgkmcnt(8)')

def p0_compute(g):
    g.wvm('kv')
    g(g.z('p_kv'))
    for i in range(0, 8, 2): g('ds_read2_b32 %s, v108 offset0:%d offset1:%d' % (v(16 + i, 2), 32 * i, 32 * i + 32))
    g('ds_read2_b32 v[24:25], v109 offset0:0 offset1:32\nds_read_b32 v26, v109 offset:256')
    for i in range(0, 8, 2): g('ds_read2_b32 %s, v110 offset0:%d offset1:%d' % (v(28 + i, 2), 32 * i, 32 * i + 32))
    for j in range(4):
        op0 = 'v_lshlrev_b32 v%d, 16, v%d' if j % 2 == 0 else 'v_and_b32 v%d, 0xffff0000, v%d'
        g(op0 % (100 + 2 * j, 44 + j // 2)); g(op0 % (101 + 2 * j, 46 + j // 2))
    K, V, U, C = 128, 152, 168, 100
    g('s_waitcnt lgkmcnt(4)')
    for i in range(11): g('v_lshlrev_b32 v%d, 16, v%d\nv_and_b32 v%d, 0xffff0000, v%d' % (K + 2 * i, 16 + i, K + 1 + 2 * i, 16 + i))
    for i in range(8): g('v_pk_mul_f32 %s, %s, %s' % (v(U + 2 * i, 2), v(K + 2 * i, 2), v(C + 6, 2)))
    for j in (2, 1, 0):
        for i in range(8): g('v_pk_fma_f32 %s, %s, %s, %s' % (v(U + 2 * i, 2), v(K + 2 * (i + 3 - j), 2), v(C + 2 * j, 2), v(U + 2 * i, 2)))
    g('s_waitcnt lgkmcnt(0)')
    for i in range(8): g('v_lshlrev_b32 v%d, 16, v%d\nv_and_b32 v%d, 0xffff0000, v%d' % (V + 2 * i, 28 + i, V + 1 + 2 * i, 28 + i))
    for i in range(8): g('v_pk_mul_f32 %s, %s, %s' % (v(U + 2 * i, 2), v(U + 2 * i, 2), v(V + 2 * i, 2)))
    for e in range(2):
        for jj in range(4): g('v_cvt_pk_bf16_f32 v%d, v%d, v%d' % (16 + 4 * e + jj, U + 2 * (7 - 2 * jj) + e, U + 2 * (6 - 2 * jj) + e))
    g('ds_write_b128 v118, v[16:19]\nds_write_b128 v118, v[20:23] offset:%d' % (32 * 144))
    g(g.z('p_u'))
    g('s_waitcnt lgkmcnt(0)\ns_barrier')
    g('ds_read_b128 v[16:19], v119\nds_read_b128 v[20:23], v119 offset:%d' % (4 * 144))
    for t in range(4):
        for hh in range(2): g('ds_read_b64_tr_b16 %s, v115 offset:%d' % (v(48 + 4 * t + 2 * hh, 2), 128 * t + 4 * IMGP * hh))

def census(g):
    L = g.new('Lc')
    g('v_cmp_ne_u32 vcc, s%d, v14\ns_cbranch_vccz L_loc' % sXCC)
    g('s_lshl_b32 s%d, s%d, 5\nv_and_b32 v9, 31, v1\ns_mov_b32 s%d, 0' % (sT0, sG, sSPIN))
    g.label(L)
    g('buffer_load_ubyte v10, v9, %s, s%d offen sc1' % (srd(SDBG), sT0))
    g('s_add_u32 s%d, s%d, 1\ns_waitcnt vmcnt(0)' % (sSPIN, sSPIN))
    g('v_cmp_ne_u32 vcc, s%d, v10\ns_cbranch_vccz L_loc' % sXCC)
    g('s_cmp_lt_u32 s%d, 6\ns_cbranch_scc1 %s\ns_branch L_glob' % (sSPIN, L))

def dma4(g, vaddr, srdreg, n, vstep, tag=None, flags=''):
    out = []
    for i in range(n):
        j = i & 3
        so = '0' if j == 0 else 's%d' % (sO1 + j - 1)
        pre = ''
        if j == 0 and i > 0:
            pre = 's_add_u32 m0, m0, 4096\nv_add_u32 %s, %d, %s\n' % (v(vaddr), vstep, v(vaddr))
        out.append(pre + 'buffer_load_dwordx4 %s, %s, %s offen offset:%d %s lds' % (v(vaddr), srd(srdreg), so, 1024 * j, flags))
    return out

def w2reg(phi):
    return a(128 + 4 * phi, 4) if phi < 32 else v(160 + 4 * (phi - 32), 4)
def w2half(phi, t):
    return a(128 + 4 * phi + 2 * t, 2) if phi < 32 else v(160 + 4 * (phi - 32) + 2 * t, 2)

def tr_addr(g, dst, tmp, pitch_sh):
    g('v_lshrrev_b32 %s, 5, v1\nv_lshlrev_b32 %s, 2, %s\nv_bfe_u32 %s, v1, 2, 2\nv_add_u32 %s, %s, %s\nv_lshlrev_b32 %s, %d, %s'
      % (v(dst), v(dst), v(dst), v(tmp), v(dst), v(dst), v(tmp), v(dst), pitch_sh, v(dst)))
    g('v_bfe_u32 %s, v1, 4, 1\nv_lshl_add_u32 %s, %s, 5, %s\nv_and_b32 %s, 3, v1\nv_lshl_add_u32 %s, %s, 3, %s'
      % (v(tmp), v(dst), v(tmp), v(dst), v(tmp), v(dst), v(tmp), v(dst)))

def qq_unpack():
    f = []
    for it in range(2):
        for j in range(8):
            op = 'v_lshlrev_b32 v%d, 16, v%d' if j % 2 == 0 else 'v_and_b32 v%d, 0xffff0000, v%d'
            f.append(op % (QN(16 * it + 2 * j), 84 + 8 * it + j // 2))
            f.append(op % (QN(16 * it + 2 * j + 1), 80 + 8 * it + j // 2))
    return f
def QN(i): return 96 + i if i < 26 else 80 + i - 26

def body(g, loc):
    fl = '' if loc else 'sc1'
    sfx = 'a' if loc else 'b'
    g('s_add_u32 s%d, s%d, 0x8000\ns_waitcnt lgkmcnt(8)' % (sT1, sURB))
    g.vmem('buffer_store_dwordx4 v[16:19], v120, %s, s%d offen %s' % (srd(SWS), sURB, fl))
    g.vmem('buffer_store_dwordx4 v[20:23], v120, %s, s%d offen %s' % (srd(SWS), sT1, fl), 'p0st')
    g(g.z('p_st'))
    t1 = 'buffer_load_dword v10, v6, %s, s%d offen' % (srd(SW1T), sTW1)
    qq_out(g)
    g.wvm('ssm')
    g('v_readfirstlane_b32 s%d, v113' % sTAG)
    if OPT['early1']:
        g.wvm('p0st')
        g('s_add_u32 s%d, s%d, 0x%x\ns_barrier\ns_add_u32 s%d, s%d, %d' % (sTAG, sTAG, TAGC, sT2, sFLG, WS_F1L if loc else WS_F1G))
        put_flag(g, sT2, fl)
        g(g.z('d0'))
        acopies(g)
        g('s_waitcnt vmcnt(0)\ns_barrier\ns_add_u32 s%d, s%d, %d' % (sT2, sFLG, WS_FQ))
        put_flag(g, sT2, 'sc1')
    else:
        acopies(g)
        g('s_add_u32 s%d, s%d, 0x%x' % (sTAG, sTAG, TAGC))
        g(g.z('d0'))
        g('s_waitcnt vmcnt(0)\ns_barrier\ns_add_u32 s%d, s%d, %d\ns_add_u32 s%d, s%d, %d' % (sT2, sFLG, WS_F1L if loc else WS_F1G, sT3, sFLG, WS_FQ))
        put_flag(g, sT2, fl, sT3)
    if OPT['ct1'] == -3: g(t1)
    g(g.z('p_fl'))
    g('v_mov_b32 v16, 0\nv_mov_b32 v17, 0\nv_lshlrev_b32 v8, 3, v1\nv_add_u32 v8, s%d, v8\nds_write_b64 v8, v[16:17] offset:4096' % sX)
    abuild(g)
    g(g.z('p_ab'))
    g.stamp(2)
    g('s_mov_b32 s%d, %d\ns_mov_b32 s%d, %d\ns_mov_b32 s%d, %d' % (sO1, 57344, sO2, 2 * 57344, sO3, 3 * 57344))
    g('v_lshrrev_b32 v8, 4, v1\nv_bfe_u32 v9, v1, 2, 2\nv_xor_b32 v9, v9, v8\nv_mul_u32_u24 v8, 3584, v8\nv_lshl_add_u32 v8, v9, 6, v8\nv_and_b32 v9, 3, v1\nv_lshl_add_u32 v8, v9, 4, v8')
    g('s_lshl_b32 s%d, s%d, 8\ns_mul_i32 s%d, s%d, %d\ns_add_u32 s%d, s%d, s%d\nv_add_u32 v126, s%d, v8' % (sT0, sFT, sT1, sW, 4 * 3584, sT0, sT0, sT1, sT0))
    g('s_lshl_b32 s%d, s%d, 1\ns_lshr_b32 s%d, s%d, 1\ns_add_u32 s%d, s%d, s%d\ns_lshl_b32 s%d, s%d, 12\ns_lshl_b32 s%d, s%d, 20\ns_add_u32 s%d, s%d, s%d\ns_add_u32 s%d, s%d, 0x%x'
      % (sT0, sR, sT1, sW, sT1, sT1, sT0, sT3, sT1, sQQ, sG, sT3, sT3, sQQ, sT3, sT3, WS_GRP + GUR))
    g('s_mov_b32 m0, s%d\ns_lshl_b32 s%d, s%d, 6\ns_add_u32 s%d, s%d, s%d\ns_lshl_b32 s%d, s%d, 6' % (sX, sT1, sG, sT0, sT0, sT1, sT4, sT0))
    g('s_lshl_b32 s%d, s%d, 6\ns_add_u32 s%d, s%d, s%d\ns_add_u32 s%d, s%d, 0x%x' % (sT1, sR, sQQ, sQQ, sT1, sQQ, sQQ, WS_GRP + GQQ))
    g('v_add_u32 v4, s%d, v4\nv_mov_b32 v0, v116\ns_mov_b32 s%d, %d\ns_mov_b32 s%d, %d\ns_mov_b32 s%d, %d\ns_mov_b32 s%d, -1' % (sQQ, sQQ, 31744, sURB, 2 * 31744, sQ3, 3 * 31744, sNEED))
    poll_pair(g, WS_F1L, WS_F1G, sNEED, 8, 9)
    g.stamp(3)
    g.vm = Cnt(63); g.lg = Cnt(15)
    for i in range(4): g.vmem('buffer_load_dwordx4 v5, %s, s%d offen offset:%d sc1 %s lds' % (srd(SWS), sT3, 1024 * i, OPT['urfl']), 'ur')
    g('s_mov_b32 m0, s%d\ns_waitcnt lgkmcnt(0)' % sM0)
    w1dma = []
    for i in range(32):
        pre = 's_add_u32 m0, m0, 4096\n' if i else 's_lshl_b32 m0, s%d, 10\n' % sW
        pre += 'v_add_u32 v126, %d, v126\n' % (4 * 57344) if i and i % 4 == 0 else 's_nop 0\n'
        w1dma.append(pre + 'buffer_load_dwordx4 v126, %s, %s offen %s lds' % (srd(SW1), '0' if i % 4 == 0 else 's%d' % (sO1 + i % 4 - 1), OPT['w1fl']))
    ring = lambda i: v(48 + 4 * (i % 8), 4)
    reads = [(pi, m) for pi in range(0, -8, -1) for m in range(4)]
    g.wvm('ur')
    g.stamp(4)
    rd = lambda i: 'ds_read_b128 %s, v2 offset:%d' % (ring(i), (reads[i][0] + 7) * 512 + 16 * reads[i][1])
    AH = 4
    lq = []
    def lds(x, tag): lq.append(tag); return x
    def lwait(tag):
        idx = [i for i, t in enumerate(lq) if t == tag]
        if not idx: return ''
        n = len(lq) - 1 - idx[-1]; del lq[:idx[-1] + 1]
        return 's_waitcnt lgkmcnt(%d)\n' % n
    for i in range(AH): g(lds(rd(i), 'B%d' % i))
    seq = []
    for i, (pi, m) in enumerate(reads):
        first = True
        for k, n in enumerate(range(-pi, 8)):
            c = '0' if i == 0 else v(16 + 4 * n, 4)
            s = 'v_mfma_f32_16x16x32_bf16 %s, %s, %s, %s' % (v(16 + 4 * n, 4), v(128 + 16 * (pi + n) + 4 * m, 4), ring(i), c)
            pre = lwait('A%d_%d' % (m, pi + n)) if pi == 0 else ''
            if first:
                pre = lwait('B%d' % i) + pre
                if i + AH < len(reads): s += '\n' + lds(rd(i + AH), 'B%d' % (i + AH))
                first = False
            if i < 3:
                for x in aread(i + 1)[2 * k: 2 * k + 2]: s += '\n' + lds(x, 'A%d_%d' % (i + 1, k))
            if len(lq) > 12:
                s += '\ns_waitcnt lgkmcnt(8)'; del lq[:-8]
            seq.append(pre + s)
    def qqloads():
        so = ['0', 's%d' % sQQ, 's%d' % sURB, 's%d' % sQ3]
        L = ['buffer_load_dwordx4 v4, %s, %s offen offset:%d sc1 lds' % (srd(SWS), so[i], 1024 * i) for i in range(4)]
        L[0] = 's_mov_b32 s%d, m0\ns_add_u32 m0, s%d, 8192\ns_nop 0\n' % (sT1, sM0) + L[0]
        L[3] += '\ns_mov_b32 m0, s%d' % sT1
        return L
    qqreads = ['ds_read_b128 %s, v0 offset:%d' % (v(80 + 8 * it + 4 * p, 4), 2048 * it + 16 * p) for it in range(2) for p in range(2)]
    fqcheck = ['v_xor_b32 v8, s%d, v8\nv_xor_b32 v9, s%d, v9' % (sTAG, sTAG), 'v_xor_b32 v10, s%d, v10\nv_xor_b32 v11, s%d, v11' % (sTAG, sTAG),
               'v_or_b32 v8, v8, v9\nv_or3_b32 v8, v8, v10, v11', 'v_cmp_ne_u32 s[%d:%d], 0, v8' % (sMK, sMK + 1)]
    NF, NC = OPT['w1first'], OPT['w1conv']
    f0, f1 = OPT['w1pace']
    cf = OPT['cf']
    t2 = 'v_min_u32 v14, 55, v1\nv_lshlrev_b32 v14, 7, v14\nbuffer_load_dword v15, v14, %s, s%d offen' % (srd(SW2), sTW2)
    ev = []
    if OPT['ct1b'] >= 0:
        ev.append((OPT['ct1'], 'v', 's_mov_b64 exec, 0xffffffff\n' + t1 + '\ns_not_b64 exec, 0\ns_nop 3', None))
        ev.append((OPT['ct1b'], 'v', 's_lshl_b64 exec, exec, 32\n' + t1 + '\ns_not_b64 exec, 0\ns_nop 3', None))
    elif OPT['ct1'] >= 0: ev.append((OPT['ct1'], 'v', t1, None))
    if OPT['ct2'] >= 0: ev.append((OPT['ct2'], 'v', t2, None))
    assert OPT['cq2'] >= OPT['cw'] and NC == 0
    ev += [(cf + 2 * i, 'v', w1dma[i], None) for i in range(NF)]
    ev += [(f0 + (i - NF) * (f1 - f0) // max(1, NC - 1 - NF), 'v', w1dma[i], None) for i in range(NF, NC)]
    c1, c2, c3, cw = OPT['cq1'], OPT['cq2'], OPT['cq3'], OPT['cw']
    ev += [(c1, 'v', 's_mov_b32 s%d, %d\nbuffer_load_dwordx4 v[8:11], v5, %s, s%d offen sc1' % (sT0, WS_FQ, srd(SWS), sT0), 'fq')]
    ev += [(c2, 'w', 'fq', None)] + [(c2 + i, 'x', x, None) for i, x in enumerate(fqcheck)]
    ev += [(c2 + 1, 'v', x, 'qq') for x in qqloads()]
    ev += [(c3 - 6, 'w', 'qq', None)] + [(c3 - 6, 'x', x, None) for x in qqreads] + [(c3, 'x', 's_waitcnt lgkmcnt(0)', None)]
    ev += [(c3 + i * (144 - c3) // 32, 'x', x, None) for i, x in enumerate(qq_unpack())]
    ev += [(cw, 'x', 's_barrier', None)]
    ev.sort(key=lambda e: e[0])
    for i, m in enumerate(seq):
        g(g.z('c%d' % i))
        g(m)
        for (sl, kind, x, tag) in ev:
            if sl != i: continue
            if kind == 'v': g.vmem(x, tag)
            elif kind == 'w': g.wvm(x)
            elif kind == 'x': g(x)
            else:
                g('s_barrier\ns_add_u32 s%d, s%d, %d' % (sT2, sFLG, WS_FW))
                put_flag(g, sT2, 'sc1')
    for i in range(4): g('ds_read_b128 %s, v3 offset:%d' % (ring(i), (3 - i) * 512))
    Lk = 'Lk1' + sfx; Lj = 'Lkj' + sfx
    g('s_cmp_lg_u32 s%d, 0\ns_cbranch_scc1 %s' % (sKap, Lk))
    for kap in range(2):
        if kap: g.label(Lk)
        for i in range(4):
            g('s_waitcnt lgkmcnt(%d)\nv_mfma_f32_16x16x32_bf16 %s, v[122:125], %s, %s' % (3 - i, v(16 + 4 * (4 * kap + i), 4), ring(i), v(16 + 4 * (4 * kap + i), 4)))
        if not kap: g('s_branch %s' % Lj)
    g.label(Lj)
    Ls = 'Lst' + sfx; Lo = 'Lsto' + sfx
    g('s_mov_b32 s%d, 0' % sSPIN)
    g.label(Ls)
    g('s_cmp_eq_u64 s[%d:%d], 0\ns_cbranch_scc1 %s' % (sMK, sMK + 1, Lo))
    g('s_add_u32 s%d, s%d, 1\ns_cmp_gt_u32 s%d, %d\ns_cbranch_scc1 %s' % (sSPIN, sSPIN, sSPIN, SPIN_MAX, Lo))
    g('s_sleep 2\nbuffer_load_dwordx4 v[8:11], v5, %s, s%d offen sc1\ns_waitcnt vmcnt(0)' % (srd(SWS), sT0))
    for x in fqcheck + qqloads(): g(x)
    g('s_waitcnt vmcnt(0)')
    for x in qqreads: g(x)
    g('s_waitcnt lgkmcnt(0)')
    for x in qq_unpack(): g(x)
    g('s_branch %s' % Ls)
    g.label(Lo)
    g('s_nop 4')
    g.stamp(5)
    for n in range(8): g('ds_write_b128 v127, %s offset:%d' % (v(16 + 4 * n, 4), 1024 * n))
    g(g.z('e1'))
    g('s_waitcnt lgkmcnt(0)\ns_barrier')
    g(g.z('e2'))
    for it in range(2):
        for kap in range(2):
            g('ds_read_b128 %s, v12 offset:%d' % (v(16 + 16 * it + 8 * kap, 4), 8192 * kap + 1024 * it))
            g('ds_read_b128 %s, v13 offset:%d' % (v(20 + 16 * it + 8 * kap, 4), 8192 * kap + 1024 * it))
    g('s_add_u32 s%d, s%d, 0x%x\ns_add_u32 s%d, s%d, 0x40000' % (sT4, sT4, WS_HT, sT3, sT4))
    for it in range(2):
        g('s_waitcnt lgkmcnt(%d)' % (4 - 4 * it))
        b = 16 + 16 * it
        for j in range(0, 8, 2): g('v_pk_add_f32 %s, %s, %s' % (v(b + j, 2), v(b + j, 2), v(b + 8 + j, 2)))
        for j in range(8): g('v_fmac_f32 v%d, v%d, v%d' % (QN(1 + 16 * it + 2 * j), QN(16 * it + 2 * j), b + j))
        for j in range(4): g('v_cvt_pk_bf16_f32 v%d, v%d, v%d' % (b + j, QN(1 + 16 * it + 4 * j), QN(3 + 16 * it + 4 * j)))
        g('buffer_store_dwordx4 %s, v7, %s, s%d offen sc1 %s' % (v(b, 4), srd(SWS), sT4 if it == 0 else sT3, OPT['htst']))
    g(g.z('e3'))
    NA = min(32 - NC, OPT['w1ahead'])
    for x in w1dma[NC:NC + NA]: g(x)
    g('s_waitcnt vmcnt(%d)' % NA)
    g(g.z('e4'))
    g('s_barrier')
    g('s_lshl_b32 s%d, s%d, 7\ns_lshl_b32 s%d, s%d, 2\ns_add_u32 s%d, s%d, s%d\ns_add_u32 s%d, s%d, %d' % (sT2, sG, sT1, sR, sT2, sT2, sT1, sT2, sT2, WS_F2))
    put_flag(g, sT2, 'sc1')
    g.stamp(6)
    for x in w1dma[NA:12]: g(x)
    g.vm = Cnt(63); g.lg = Cnt(15)
    tr_addr(g, 2, 8, 6)
    g('s_lshr_b32 s%d, s%d, 1\ns_lshl_b32 s%d, s%d, 15\nv_add_u32 v121, s%d, v2\nv_add_u32 v122, 0x10000, v121\ns_lshl_b32 s%d, s%d, 13\nv_add_u32 v123, s%d, v2' % (sSH, sW, sT0, sSH, sT0, sT1, sW, sT1))
    tr_addr(g, 3, 8, 8)
    g('s_lshl_b32 s%d, s%d, 1\nv_bfe_u32 v8, v1, 2, 2\nv_xor_b32 v8, s%d, v8\nv_lshl_add_u32 v8, v8, 6, v3\nv_xor_b32 v9, 64, v8\nv_add_u32 v10, 0x10000, v8\nv_add_u32 v11, 0x10000, v9' % (sT0, sKap, sT0))
    g('s_lshl_b32 s%d, s%d, 2\ns_add_u32 s%d, s%d, s%d\ns_mul_i32 s%d, s%d, 57344\ns_lshl_b32 s%d, s%d, 13\ns_add_u32 s%d, s%d, s%d\ns_lshl_b32 s%d, s%d, 12\ns_add_u32 s%d, s%d, s%d'
      % (sT4, sQ4, sT4, sT4, sSH, sT3, sT4, sT0, sFL, sT3, sT3, sT0, sT0, sKap, sT3, sT3, sT0))
    g('s_lshl_b32 s%d, s%d, 20\ns_add_u32 s%d, s%d, 0x%x\ns_add_u32 s%d, s%d, s%d\ns_lshl_b32 s%d, s%d, 8\ns_add_u32 s%d, s%d, s%d\ns_add_u32 s%d, s%d, 0x%x'
      % (sDM, sG, sDM, sDM, WS_GRP, sT3, sT3, sDM, sT4, sT4, sT4, sT4, sDM, sT4, sT4, GRI))
    def poll_all(off, L, D, first):
        g('s_mov_b32 s%d, %d\ns_mov_b32 s%d, 0' % (sT0, off, sSPIN))
        if first:
            g('buffer_load_dwordx4 v[12:15], v5, %s, s%d offen sc1' % (srd(SWS), sT0))
            first()
            g('s_branch %sc' % L)
        g.label(L)
        g('buffer_load_dwordx4 v[12:15], v5, %s, s%d offen sc1' % (srd(SWS), sT0))
        g('s_add_u32 s%d, s%d, 1\ns_cmp_gt_u32 s%d, %d\ns_cbranch_scc1 %s' % (sSPIN, sSPIN, sSPIN, SPIN_MAX, D))
        g.label(L + 'c')
        g('s_waitcnt vmcnt(0)')
        g('v_xor_b32 v12, s%d, v12\nv_xor_b32 v13, s%d, v13\nv_xor_b32 v14, s%d, v14\nv_xor_b32 v15, s%d, v15' % (sTAG, sTAG, sTAG, sTAG))
        g('v_or_b32 v12, v12, v13\nv_or3_b32 v12, v12, v14, v15\nv_cmp_ne_u32 vcc, 0, v12\ns_cbranch_vccnz %s' % L)
        g.label(D)
    def htouch():
        return ('s_lshl_b32 s%d, s%d, 12\ns_lshl_b32 s%d, s%d, 10\ns_add_u32 s%d, s%d, s%d\ns_add_u32 s%d, s%d, s%d\ns_add_u32 s%d, s%d, 0xC0000\nv_and_b32 v8, 7, v1\nv_lshlrev_b32 v8, 7, v8\n'
                % (sT1, sR, sT2, sW, sT1, sT1, sT2, sT1, sT1, sDM, sT1, sT1)
                + 'buffer_load_dword v15, v8, %s, s%d offen %s@' % (srd(SWS), sT1, OPT['htfl'])
                + 's_add_u32 s%d, s%d, 0x%x\nv_and_b32 v8, 31, v1\nv_lshlrev_b32 v8, 7, v8\nbuffer_load_dword v15, v8, %s, s%d offen' % (sT1, sDM, GRI, srd(SWS), sT1))
    g('v_lshrrev_b32 v12, 3, v1\nv_bfe_u32 v13, v1, 4, 1\nv_lshlrev_b32 v13, 2, v13\nv_and_b32 v14, 7, v1\nv_xor_b32 v13, v13, v14\nv_lshlrev_b32 v12, 10, v12\nv_lshl_add_u32 v12, v13, 4, v12')
    g('s_mul_i32 s%d, s%d, %d\ns_mul_i32 s%d, s%d, %d\ns_add_u32 s%d, s%d, s%d\ns_and_b32 s%d, s%d, 7\ns_lshl_b32 s%d, s%d, 7\ns_add_u32 s%d, s%d, s%d\nv_add_u32 v127, s%d, v12\ns_mul_i32 s%d, s%d, 7168'
      % (sT0, sPH, 896 * 1024, sT1, sW, 56 * 1024, sT0, sT0, sT1, sT1, sR, sT1, sT1, sT0, sT0, sT1, sT0, sDV, sW))
    PB = [LX, 0, 32768, 65536]
    def w2pair(P):
        L = dma4(g, 127, SW2, 7, 32768)
        L[0] = 's_add_u32 m0, s%d, %d\n%s\n' % (sDV, PB[P], 'v_add_u32 v127, %d, v127' % (229376 - 32768) if P else 's_nop 0') + L[0]
        return L
    nis = max(NA, 12)
    for o in range(4):
        g('s_waitcnt vmcnt(%d)\ns_barrier' % (nis - 8 * (o + 1)))
        g(g.z('x%d' % o))
        for j in range(8 * o, 8 * o + 8):
            for i in range(2):
                for t in range(2):
                    g('ds_read_b64_tr_b16 %s, v%d offset:%d' % (a(8 * j + 4 * i + 2 * t, 2), 8 + i + 2 * (j >> 4), 4096 * (j & 15) + 2048 * t))
            if nis < 32: g(w1dma[nis]); nis += 1
            g('s_waitcnt lgkmcnt(10)')
        if o == 2:
            assert nis == 32
            extra = []
            if OPT['ct2'] == -2: extra.append(t2)
            if loc and OPT['htouch'] == 'w3': extra += htouch().replace('v8', 'v14').split('@')
            g('s_mov_b32 s%d, %d\ns_mov_b32 s%d, %d\ns_mov_b32 s%d, %d' % (sO1, 7168, sO2, 2 * 7168, sO3, 3 * 7168))
            for x in extra: g(x)
            nis += len(extra)
    for i in range(4): g('v_mov_b32 v%d, 0x3f803f80' % (112 + i))
    LM = LX + 28672
    g('v_lshrrev_b32 v6, 5, v1\nv_lshlrev_b32 v6, 6, v6\ns_lshl_b32 s%d, s%d, 7\ns_add_u32 s%d, s%d, %d\nv_add_u32 v6, s%d, v6\nv_xor_b32 v7, 256, v6' % (sT0, sW, sT0, sT0, LM, sT0))
    g('s_waitcnt lgkmcnt(0)')
    g(g.z('xr'))
    g.stamp(7)
    def cs_part():
        Lc = 'Lcs' + sfx
        g('s_cmp_lg_u32 s%d, 0\ns_cbranch_scc1 %s' % (sSH, Lc))
        for sh in range(2):
            if sh: g.label(Lc)
            C = v(80 + 16 * sh, 16)
            for j in range(32): g('v_mfma_f32_32x32x16_bf16 %s, %s, v[112:115], %s' % (C, a(8 * j + 4 * sh, 4), '0' if j == 0 else C))
            g('s_nop 7\ns_nop 3\ns_mov_b32 exec_lo, 1\ns_mov_b32 exec_hi, 1')
            for i in range(4): g('ds_write_b128 v6, %s offset:%d' % (v(80 + 16 * sh + 4 * i, 4), 16 * i))
            g('s_mov_b64 exec, -1')
            if not sh: g('s_branch %sj' % Lc)
        g.label(Lc + 'j')
        g('s_cmp_lg_u32 s%d, 0\ns_cbranch_scc1 Lf2d%s' % (sW, sfx))
    poll_all(WS_F2, 'Lf2' + sfx, 'Lf2d' + sfx, cs_part)
    g('s_waitcnt lgkmcnt(0)\ns_barrier')
    g.stamp(8)
    g('s_cmp_ge_u32 s%d, 28\ns_cbranch_scc1 Lsw%s' % (sR, sfx))
    g.vm = Cnt(63); g.lg = Cnt(15)
    g('s_lshl_b32 s%d, s%d, 15\ns_lshl_b32 s%d, s%d, 13\ns_add_u32 s%d, s%d, s%d\ns_lshl_b32 s%d, s%d, 17\ns_add_u32 s%d, s%d, s%d\ns_add_u32 s%d, s%d, 0x%x\ns_mov_b32 m0, s%d'
      % (sT1, sSH, sT0, sKap, sT1, sT1, sT0, sT0, sT, sT0, sT0, sT1, sT0, sT0, WS_HT, sT1))
    def hdma(steps):
        L = []
        for n, st in enumerate(steps):
            for i in range(4):
                x = 'buffer_load_dwordx4 v5, %s, s%d offen offset:%d sc1 lds' % (srd(SWS), sT0, 1024 * i)
                if i == 0 and n: x = 's_add_u32 m0, m0, %d\ns_add_u32 s%d, s%d, %d\n' % (st, sT0, sT0, st) + x
                L.append((x, 'h%d' % (n // 2)))
        return L
    hd = hdma([0, 4096, 12288, 4096, 65536 - 20480, 4096, 12288, 4096])
    NH0 = OPT['nh0']
    g('v_and_b32 v8, 31, v1\nv_lshlrev_b32 v4, 3, v8')
    for x, t in hd[:NH0]: g.vmem(x, t)
    Lc = 'Lcr' + sfx
    g('s_cmp_lg_u32 s%d, 0\ns_cbranch_scc1 %s' % (sSH, Lc))
    for sh in range(2):
        if sh: g.label(Lc)
        for i in range(4): g('ds_read_b128 %s, v7 offset:%d' % (v(96 - 16 * sh + 4 * i, 4), 16 * i))
        if not sh: g('s_branch %sj' % Lc)
    g.label(Lc + 'j')
    g.wvm('h0')
    g('s_barrier')
    g.stamp(9)
    late = [(0, 0, x, t) for x, t in hd[NH0:]]
    if OPT['ct2'] == -1: late.append((0, 0, t2, None))
    if OPT['ct2'] == -4: late.append((1, OPT['mj'][1] + 1, t2, None))
    pb, pj = OPT['pw']
    late += [(pb, pj, x, None) for x in w2pair(0)] + [(1, 12, x, None) for x in w2pair(1) + w2pair(2)]
    AH = 5
    RG = lambda j: 128 + 4 * (j % 8)
    def rdh(B, j): return ['ds_read_b64_tr_b16 %s, v%d offset:%d' % (v(RG(j) + 2 * t, 2), 121 + B, 1024 * j + 512 * t) for t in range(2)]
    def epilogue(B):
        f = []
        for i in range(2):
            A = 16 + 32 * B + 16 * i; P = 112 if i == 0 else 160
            for k in range(16): f.append('v_fmac_f32 v%d, v120, v%d' % (A + k, 80 + 16 * i + k))
            for k in range(8): f.append('v_cvt_pk_bf16_f32 v%d, v%d, v%d' % (P + k, A + 2 * k, A + 2 * k + 1))
            for k in range(8): f.append('v_pk_max_i16 v%d, v%d, 0' % (P + k, P + k))
            for k in range(2): f.append('buffer_store_dwordx4 %s, v5, %s, s%d offen offset:%d %s' % (v(P + 4 * k, 4), srd(SWS), sT3, 2048 * i + 1024 * k, fl))
        return f
    def mload(B): return 'buffer_load_dwordx2 v[124:125], v4, %s, s%d offen offset:%d sc1' % (srd(SWS), sT4, 512 * B)
    def mcheck(B):
        L = 'Lm%d%s' % (B, sfx)
        return ('v_cmp_ne_u32 vcc, s%d, v125\ns_cbranch_vccz %sk\ns_mov_b32 s%d, 0\n%s:\n%s\ns_add_u32 s%d, s%d, 1\ns_cmp_gt_u32 s%d, %d\ns_cbranch_scc1 %sk\ns_waitcnt vmcnt(0)\n'
                % (sTAG, L, sSPIN, L, mload(B), sSPIN, sSPIN, sSPIN, SPIN_MAX, L)
                + 'v_cmp_ne_u32 vcc, s%d, v125\ns_cbranch_vccnz %s\n%sk:\nv_lshlrev_b32 v120, 16, v124\nv_xor_b32 v120, 0x80000000, v120' % (sTAG, L, L))
    lq = ['cs'] * 4
    def lds(x, tag): lq.append(tag); return x
    def lwait(tag):
        idx = [i for i, t in enumerate(lq) if t == tag]
        if not idx: return ''
        n = len(lq) - 1 - idx[-1]; del lq[:idx[-1] + 1]
        return 's_waitcnt lgkmcnt(%d)' % n
    for j in range(AH):
        for x in rdh(0, j): g(lds(x, (0, j)))
    m0j, e0, e1 = OPT['mj'], OPT['e0'], OPT['e1']
    for B in range(2):
        ep = epilogue(0) if B else []
        slots = {k: [] for k in range(64)}
        for k, x in enumerate(ep): slots[2 * e0 + k * 2 * (e1 - e0) // len(ep)].append(x)
        for j in range(32):
            g(g.z('g%d_%d' % (B, j)))
            nb, nj = (B, j + AH) if j + AH < 32 else (B + 1, j + AH - 32)
            rr = rdh(nb, nj) if nb < 2 else []
            need = {(0, 10): 'h1', (0, 26): 'h2', (1, 10): 'h3'}.get((B, j))
            if need: g('s_waitcnt vmcnt(%d)\ns_barrier' % g.vm.need(need))
            if (B, j) == (1, e0 - 1):
                g.wvm('m'); g(mcheck(0))
            g(lwait((B, j)))
            for i in range(2):
                A = v(16 + 32 * B + 16 * i, 16)
                g('v_mfma_f32_32x32x16_bf16 %s, %s, %s, %s' % (A, a(8 * j + 4 * i, 4), v(RG(j), 4), '0' if j == 0 else A))
                if rr: g(lds(rr[i], (nb, nj)))
                for x in slots[2 * j + i]:
                    if x.startswith('buffer'): g.vmem(x)
                    else: g(x)
                if late and (i == 1 or OPT['dense']) and late[0][:2] <= (B, j):
                    _, _, x, t = late.pop(0); g.vmem(x, t)
            if (B, j) == m0j: g.vmem(mload(0), 'm')
            if (B, j) == (1, e1 + 1): g.vmem(mload(1) + '\ns_add_u32 s%d, s%d, %d' % (sT3, sT3, 2 * 57344), 'm')
    g.wvm('m'); g(mcheck(1))
    g('s_nop 7')
    for x in epilogue(1): g(x)
    for x in late: g(x[2])
    g('s_waitcnt vmcnt(%d)\ns_barrier\ns_add_u32 s%d, s%d, %d' % (len(late), sT2, sFLG, WS_F3L if loc else WS_F3G))
    put_flag(g, sT2, fl)
    for x in w2pair(3): g(x)
    g('s_branch Lg2%s' % sfx)
    g.label('Lsw' + sfx)
    g('s_lshl_b32 s%d, s%d, 17\ns_lshl_b32 s%d, s%d, 13\ns_add_u32 s%d, s%d, s%d\ns_add_u32 s%d, s%d, 0x%x\ns_mov_b32 m0, s%d\ns_nop 0' % (sT0, sT, sT1, sW, sT0, sT0, sT1, sT0, sT0, WS_HT, sT1))
    for x, t in hdma([0, 4096] + [28672, 4096] * 3): g(x)
    if OPT['ct2'] == -1: g(t2)
    g('s_lshl_b32 s%d, s%d, 10\ns_add_u32 s%d, s%d, s%d\ns_lshl_b32 s%d, s%d, 8\ns_add_u32 s%d, s%d, s%d\ns_add_u32 s%d, s%d, 0x%x\nv_and_b32 v8, 31, v1\nv_lshlrev_b32 v3, 3, v8'
      % (sT4, sQ4, sT4, sT4, sDM, sT1, sKap, sT4, sT4, sT1, sT4, sT4, GRI))
    g('v_lshlrev_b32 v7, 5, v8\nv_add_u32 v7, %d, v7\ns_lshl_b32 s%d, s%d, 3\nv_add_u32 v6, s%d, v7\nv_mov_b32 v4, 0x3f803f80\ns_lshl_b32 s%d, s%d, 10\nv_add_u32 v7, s%d, v7\nv_mov_b32 v117, s%d'
      % (LM, sT1, sW, sT1, sT1, sKap, sT1, sTAG))
    for b in range(4):
        g('s_waitcnt vmcnt(%d)' % (24 - 8 * b + (1 if OPT['ct2'] == -1 else 0) + (b >> 1)))
        if b == 2: g('v_add_u32 v123, 0x10000, v123')
        for j in range(8):
            for t in range(2): g('ds_read_b64_tr_b16 %s, v123 offset:%d' % (v(48 + 4 * j + 2 * t, 2), 32768 * (b & 1) + 1024 * j + 512 * t))
            if j == 5: g('s_waitcnt lgkmcnt(6)')
        g('v_mov_b32 v106, 0\nv_mov_b32 v107, 0\ns_waitcnt lgkmcnt(0)')
        for i in range(32): g('v_dot2c_f32_bf16 v106, v%d, v4\nv_dot2c_f32_bf16 v107, v%d, v%d' % (48 + i, 48 + i, 48 + i))
        g('s_nop 2\nv_mov_b32 v108, v106\nv_mov_b32 v109, v107\ns_nop 1\nv_permlane32_swap_b32 v106, v108\nv_permlane32_swap_b32 v107, v109\ns_nop 1')
        g('v_add_f32 v106, v106, v108\nv_add_f32 v107, v107, v109\nds_write_b64 v6, v[106:107] offset:%d' % (1024 * b))
        if b & 1:
            g('s_waitcnt lgkmcnt(0)\ns_barrier\nds_read_b128 v[108:111], v7 offset:%d\nds_read_b128 v[112:115], v7 offset:%d\ns_waitcnt lgkmcnt(0)' % (1024 * (b - 1), 1024 * (b - 1) + 16))
            for x in ['v_pk_add_f32 v[108:109], v[108:109], v[110:111]', 'v_pk_add_f32 v[112:113], v[112:113], v[114:115]',
                      'v_pk_add_f32 v[108:109], v[108:109], v[112:113]',
                      'v_mul_f32 v108, 0x3b000000, v108', 'v_mul_f32 v109, 0x3b000000, v109',
                      'v_fma_f32 v109, -v108, v108, v109', 'v_max_f32 v109, 0, v109',
                      'v_cvt_pk_bf16_f32 v109, v109, v109', 'v_lshlrev_b32 v109, 16, v109',
                      'v_add_f32 v109, 0x3727c5ac, v109', 'v_cvt_pk_bf16_f32 v109, v109, v109', 'v_lshlrev_b32 v109, 16, v109',
                      'v_sqrt_f32 v109, v109', 's_nop 0', 'v_cvt_pk_bf16_f32 v116, v108, v109',
                      'buffer_store_dwordx2 v[116:117], v3, %s, s%d offen offset:%d %s' % (srd(SWS), sT4, 256 * (b - 1), fl)]: g(x)
    g('s_barrier')
    for P in range(4):
        for x in w2pair(P): g(x)
    g.label('Lg2' + sfx)
    g.stamp(10)
    g.vm = Cnt(63); g.lg = Cnt(15)
    g('s_lshr_b32 s%d, s%d, 3\ns_and_b32 s%d, s%d, 7\ns_lshr_b32 s%d, s%d, 1\ns_lshl_b32 s%d, s%d, 2\ns_add_u32 s%d, s%d, s%d\ns_lshl_b32 s%d, s%d, 2\ns_add_u32 s%d, s%d, s%d'
      % (sQ4, sR, sFT, sR, sT0, sG, sT0, sT0, sT0, sT0, sQ4, sT0, sT0, sT, sT0, sW))
    g('s_lshl_b32 s%d, s%d, 15\ns_lshl_b32 s%d, s%d, 12\ns_add_u32 s%d, s%d, s%d\ns_lshl_b32 s%d, s%d, 11\ns_add_u32 s%d, s%d, s%d\ns_add_u32 s%d, s%d, 0x%x'
      % (sT0, sT, sT1, sFT, sT0, sT0, sT1, sT1, sPH, sT0, sT0, sT1, sT0, sT0, WS_HT))
    g('s_lshl_b32 s%d, s%d, 12\ns_add_u32 s%d, s%d, 98304\ns_mov_b32 m0, s%d\ns_nop 0' % (sT5, sW, sT5, sT5, sT5))
    g('buffer_load_dwordx4 v5, %s, s%d offen sc1 lds\nbuffer_load_dwordx4 v5, %s, s%d offen offset:1024 sc1 lds' % (srd(SWS), sT0, srd(SWS), sT0))
    tr_addr(g, 2, 8, 6)
    g('v_add_u32 v2, s%d, v2' % sT5)
    tr_addr(g, 3, 8, 7)
    g('v_bfe_u32 v8, v1, 3, 1\nv_xor_b32 v8, s%d, v8\nv_lshl_add_u32 v120, v8, 6, v3\nv_xor_b32 v117, 64, v120' % sPH)
    g('v_add_u32 v116, %d, v117\nv_add_u32 v118, 0x10000, v117\nv_add_u32 v119, %d, v120\nv_add_u32 v121, 0x10000, v120' % (LX, LX))
    g('v_and_b32 v8, 31, v1\nv_lshlrev_b32 v4, 3, v8\nv_mul_u32_u24 v6, 80, v8\nv_lshrrev_b32 v9, 5, v1\nv_lshl_add_u32 v6, v9, 3, v6\nv_add_u32 v6, s%d, v6' % sT5)
    g('v_lshrrev_b32 v8, 2, v1\nv_and_b32 v9, 3, v1\nv_mul_u32_u24 v7, 80, v8\nv_lshl_add_u32 v7, v9, 4, v7\nv_add_u32 v7, s%d, v7\nv_lshlrev_b32 v3, 10, v8\nv_lshl_add_u32 v3, v9, 4, v3' % sT5)
    g('s_mul_i32 s%d, s%d, 7\ns_lshl_b32 s%d, 0x7f, s%d' % (sT0, sQ4, sNEED, sT0))
    g('s_lshl_b32 s%d, s%d, 2\ns_add_u32 s%d, s%d, s%d\ns_mul_i32 s%d, s%d, 57344\ns_add_u32 s%d, s%d, s%d\ns_lshl_b32 s%d, s%d, 8\ns_add_u32 s%d, s%d, s%d\ns_add_u32 s%d, s%d, 0x%x'
      % (sT4, sQ4, sT4, sT4, sW, sT3, sT4, sT3, sT3, sDM, sT4, sT4, sT4, sT4, sDM, sT4, sT4, GRI))
    poll_pair(g, WS_F3L, WS_F3G, sNEED, 8, 9)
    g.stamp(11)
    def hload(i):
        pre = 's_add_u32 s%d, s%d, 4096\n' % (sT3, sT3) if i and i % 4 == 0 else ''
        return pre + 'buffer_load_dwordx4 %s, v5, %s, s%d offen offset:%d sc1 %s' % (a(4 * i, 4), srd(SWS), sT3, 1024 * (i % 4), OPT['Hfl'])
    NH = OPT['nH']
    for i in range(NH): g.vmem(hload(i), 'H%d' % i)
    g.vmem('buffer_load_dwordx2 v[96:97], v4, %s, s%d offen sc1' % (srd(SWS), sT4), 'rinv')
    for i in range(4): g('ds_read_b64_tr_b16 %s, v2 offset:%d' % (v(98 + 2 * i, 2), 512 * i))
    g('s_barrier')
    def rdw(n):
        hlf, ks = divmod(n, 56)
        P, k = divmod(ks, 14)
        base = [116, 117, 117, 118][P]; off = k * 2048 + (32768 if P == 2 else 0)
        return ['ds_read_b64_tr_b16 %s, v%d offset:%d' % (v(128 + 4 * (n % 8) + 2 * t, 2), base + 3 * hlf, off + 1024 * t) for t in range(2)]
    g('s_waitcnt lgkmcnt(0)')
    AW = 5
    for n in range(AW):
        for x in rdw(n): g(x)
    un = [('v_lshlrev_b32 v%d, 16, v%d' if j % 2 == 0 else 'v_and_b32 v%d, 0xffff0000, v%d') % (80 + j, 98 + j // 2) for j in range(16)]
    ex = ['s_xor_b32 s%d, s2, 1' % sT0, 's_and_b32 s%d, s%d, 7\ns_lshl_b32 s%d, s%d, 5' % (sT1, sT0, sT1, sT1), 's_add_u32 s%d, s%d, s%d\ns_lshl_b32 s%d, s%d, 2' % (sT1, sT1, sR, sT1, sT1),
          's_add_u32 s%d, s%d, s%d\ns_lshl_b32 s%d, s%d, 12' % (sT1, sT1, sW, sO1, sT1), 's_add_u32 s%d, s%d, 0x%x\ns_xor_b32 s%d, s%d, 0x80000' % (sO1, sO1, WS_XB, sO2, sO1),
          's_lshl_b32 s%d, s%d, 15\ns_lshl_b32 s%d, s%d, 7' % (sT0, sT, sT1, sFT), 's_add_u32 s%d, s%d, s%d\ns_lshl_b32 s%d, s%d, 6' % (sT0, sT0, sT1, sT1, sPH),
          's_add_u32 s%d, s%d, s%d\ns_add_u32 s%d, s%d, 0x4000' % (sT0, sT0, sT1, sT1, sT0), ('v_cmp_ne_u32 vcc, s%d, v97\ns_cbranch_vccz Lr%sk\ns_mov_b32 s%d, 0\nLr%s:\nbuffer_load_dwordx2 v[96:97], v4, %s, s%d offen sc1\ns_add_u32 s%d, s%d, 1\ns_cmp_gt_u32 s%d, %d\ns_cbranch_scc1 Lr%sk\n'
           % (sTAG, sfx, sSPIN, sfx, srd(SWS), sT4, sSPIN, sSPIN, sSPIN, SPIN_MAX, sfx)
           + 's_waitcnt vmcnt(0)\nv_cmp_ne_u32 vcc, s%d, v97\ns_cbranch_vccnz Lr%s\nLr%sk:\nv_and_b32 v96, 0xffff0000, v96' % (sTAG, sfx, sfx)), 'v_rcp_f32 v96, v96', 'v_mov_b32 v8, s%d\nv_mov_b32 v12, 0xff' % sTAG, 'v_lshrrev_b32 v9, 8, v8\nv_lshrrev_b32 v10, 16, v8', 'v_lshrrev_b32 v11, 24, v8']
    fl2 = un + ex
    send = []
    for i in range(4):
        send += ['v_bfi_b32 v%d, v12, v%d, v%d' % (16 + 4 * i + k, 8 + k, 16 + 4 * i + k) for k in range(4)]
        send.append('buffer_store_dwordx4 %s, v5, %s, s%d offen offset:%d sc1 %s' % (v(16 + 4 * i, 4), srd(SWS), sO1, 1024 * i, OPT['xbst']))
    for n in range(112):
        hlf, ks = divmod(n, 56)
        A = v(16 + 16 * hlf, 16)
        if n == 56: g.stamp(12)
        if not hlf: g.wvm('H%d' % ks)
        g('s_waitcnt lgkmcnt(%d)' % (2 * min(AW - 1, 111 - n)))
        g('v_mfma_f32_32x32x16_bf16 %s, %s, %s, %s' % (A, v(128 + 4 * (n % 8), 4), a(4 * ks, 4), '0' if ks == 0 else A))
        if n + AW < 112:
            for x in rdw(n + AW): g(x)
        if n + NH < 56: g.vmem(hload(n + NH), 'H%d' % (n + NH))
        if 4 <= n < 4 + len(fl2): g(fl2[n - 4])
        if 59 <= n < 63:
            for x in send[5 * (n - 59): 5 * (n - 58)]: g(x)
    g(g.z('y0'))
    L = 'Lx' + sfx; D = 'Lxd' + sfx
    g('s_mov_b32 s%d, 0' % sSPIN)
    g.label(L)
    for i in range(4): g('buffer_load_dwordx4 %s, v5, %s, s%d offen offset:%d sc1' % (v(48 + 4 * i, 4), srd(SWS), sO2, 1024 * i))
    g('s_add_u32 s%d, s%d, 1\ns_cmp_gt_u32 s%d, %d\ns_cbranch_scc1 %s' % (sSPIN, sSPIN, sSPIN, SPIN_MAX, D))
    for i in range(4):
        g('s_waitcnt vmcnt(%d)' % (3 - i))
        for k in range(4):
            g('v_xor_b32 v%d, v%d, v%d' % (64 + k, 8 + k, 48 + 4 * i + k))
        if i == 0: g('v_or3_b32 v13, v64, v65, v66\nv_or_b32 v13, v13, v67')
        else: g('v_or3_b32 v13, v13, v64, v65\nv_or3_b32 v13, v13, v66, v67')
    g('v_and_b32 v13, 0xff, v13\nv_cmp_ne_u32 vcc, 0, v13\ns_cbranch_vccnz %s' % L)
    g.label(D)
    g('s_waitcnt vmcnt(0)\ns_nop 4')
    g(g.z('y1'))
    for blk in range(4):
        b = 4 * blk
        g('v_pk_add_f32 %s, %s, %s\nv_pk_add_f32 %s, %s, %s' % (v(48 + b, 2), v(48 + b, 2), v(32 + b, 2), v(50 + b, 2), v(50 + b, 2), v(34 + b, 2)))
        for j in range(4): g('v_fmac_f32 v%d, v96, v%d' % (80 + b + j, 48 + b + j))
        g('v_cvt_pk_bf16_f32 v%d, v%d, v%d\nv_cvt_pk_bf16_f32 v%d, v%d, v%d' % (64 + 2 * blk, 80 + b, 81 + b, 65 + 2 * blk, 82 + b, 83 + b))
        g('ds_write_b64 v6, %s offset:%d' % (v(64 + 2 * blk, 2), 16 * blk))
    g('s_waitcnt lgkmcnt(0)\nds_read_b128 v[72:75], v7\nds_read_b128 v[76:79], v7 offset:%d' % (16 * 80))
    g('s_waitcnt lgkmcnt(1)\nbuffer_store_dwordx4 v[72:75], v3, %s, s%d offen %s\ns_waitcnt lgkmcnt(0)\nbuffer_store_dwordx4 v[76:79], v3, %s, s%d offen %s' % (srd(SOUT), sT0, OPT['ost'], srd(SOUT), sT1, OPT['ost']))
    g('s_branch L_fin')

def finish(g):
    g.label('L_fin')
    g('s_cmp_lg_u32 s2, 0\ns_cbranch_scc1 L_noep\ns_mov_b32 s%d, %d' % (sT2, WS_EPOCH))
    put_flag(g, sT2, 'sc1')
    g.label('L_noep')
    if g.diag:
        g('s_waitcnt vmcnt(0)')
        g.stamp(13)
        if not g.zoom: g('s_mov_b32 s%d, s%d' % (SSTAMP + 15, sXCC))
        g('s_waitcnt lgkmcnt(0)')
        if g.zoom: g('s_mov_b32 s%d, s100' % (SSTAMP + 1))
        g('s_cmp_lg_u32 s%d, 0\ns_cbranch_scc1 L_exit' % sW)
        for i in range(16): g('v_mov_b32 v%d, s%d' % (16 + i, SSTAMP + i))
        g('s_lshl_b32 s%d, s2, 6\ns_add_u32 s%d, s%d, 0x%x\nv_mov_b32 v8, 0\ns_mov_b64 exec, 1' % (sT0, sT0, sT0, WS_STAMP))
        for i in range(4): g('buffer_store_dwordx4 %s, v8, %s, s%d offen offset:%d' % (v(16 + 4 * i, 4), srd(SWS), sT0, 16 * i))
    g.label('L_exit')
    g('s_endpgm')

def build(diag=False, force=None, zoom=None):
    g = G(diag, zoom)
    prologue(g)
    ln1(g)
    p0_compute(g)
    g.stamp(1)
    if g.diag and not g.zoom: g('s_mov_b32 s%d, 0' % (SSTAMP + 14))
    import copy
    vm0 = copy.deepcopy(g.vm)
    if force == 'glob': g('s_waitcnt vmcnt(0)\ns_branch L_glob')
    else: census(g)
    g.label('L_loc')
    if g.diag and not g.zoom: g('s_mov_b32 s%d, 1' % (SSTAMP + 14))
    body(g, True)
    finish(g)
    g.label('L_mainend')
    g.vm = vm0
    g.label('L_glob')
    body(g, False)
    hdr = open('cdna_kernels/%s.s.ref' % NAME).read().split('; Override launch')[0]
    s = hdr + '; @launch grid=(256,1,1) block=(256,1,1) lds=%d\n' % LDS_BYTES
    s += '.amdgcn_target "amdgcn-amd-amdhsa--gfx950"\n.text\n.globl %s_kernel\n.p2align 8\n.type %s_kernel,@function\n%s_kernel:\n' % (NAME, NAME, NAME)
    s += '\n'.join(g.l) + '\n'
    s += '.section .rodata,"a"\n.p2align 6\n.amdhsa_kernel %s_kernel\n' % NAME
    s += ('  .amdhsa_next_free_vgpr 512\n  .amdhsa_next_free_sgpr 102\n  .amdhsa_accum_offset 256\n  .amdhsa_group_segment_fixed_size 0\n'
          '  .amdhsa_kernarg_size 96\n  .amdhsa_user_sgpr_count 2\n  .amdhsa_user_sgpr_kernarg_segment_ptr 1\n  .amdhsa_system_sgpr_workgroup_id_x 1\n.end_amdhsa_kernel\n')
    return s

ZOOMS = dict(
    g2=['s10', 's11', 's12', 'y0', 'y1', 's13'],
    w3b=['s6', 'x0', 'x1', 'x2', 'x3', 's7', 's8', 's9'],
    ep=['c143', 's5', 'e1', 'e2', 'e3', 'e4', 's6', 'x16'],
    ln=['s0', 'p_is', 'p_i2', 'p_q', 'l3', 'l4', 'p_qq', 'p_kv'],
    ln0=['p_is', 'p_q', 'l1', 'l2', 'l3', 'l4', 'p_qq', 'p_kv'],
    p1=['s0', 'l3', 'p_kv', 'p_st', 'p_qq', 'd0', 'p_fl', 's3'],
    cv2=['s4', 'c46', 'c48', 'c110', 'c111', 'c118', 'c119', 'c143'],
    p0=['s0', 'p_is', 'p_q', 'p_qq', 'p_kv', 'p_st', 'p_fl', 'p_ab'],
    conv=['s0', 'p_fl', 's3', 's4', 'c143', 's5', 's6', 's7'],
    w3=['s6', 's7', 's8', 's9', 's10', 's11', 's12', 's13'],
    g1a=['s8', 's9', 'g0_10', 'g0_11', 'g0_26', 'g0_27', 'g1_0', 'g1_5'],
    g1b=['s9', 'g1_0', 'g1_9', 'g1_10', 'g1_11', 'g1_31', 's10', 's11'],
)
if __name__ == '__main__':
    for n, zz in ZOOMS.items(): open('zoom_%s.s' % n, 'w').write(build(diag='cyc', zoom=zz))
    open('cdna_kernels/%s.s' % NAME, 'w').write(build())
    open('diag.s', 'w').write(build(diag=True))
    open('diagcyc.s', 'w').write(build(diag='cyc'))
    open('glob.s', 'w').write(build(diag=True, force='glob'))
```

```python
import sys
NAME = 'sequential_preLN__ssm_conv_h3__dense_activation_relu__prompt'

WS_EPOCH = 0x0
WS_F1L, WS_F1G = 0x400, 0x800
WS_F2 = 0x1000
WS_F3L, WS_F3G = 0x1800, 0x1C00
WS_F3A = 0x2C00
WS_CNT, WS_G2 = 0x2400, 0x2800
WS_STAMP = 0x4000
WS_FQ = 0x2000
WS_ST = 0x10000
WS_F4 = 0x8000
WS_HT = 0x100000
WS_XB = 0x400000
WS_GRP = 0x800000
GQQ, GUR, GRI = 0, 0x40000, 0xE0000
WS_BYTES = 0x1000000
TAGC = 0x9E3779B9
LX = 131072
LDS_BYTES = 163840
LIMG, IMGP = LX + 9216, 1088
LSSM, SSMQ, LQS = 65536, 4608, 102400
def ssm_blk(b): return b * SSMQ + 64
SSMA = (0, 40, 136, 168)

class Cnt:
    def __init__(self, mx): self.n = 0; self.tags = {}; self.mx = mx
    def issue(self, tag=None):
        self.n += 1
        if tag is not None: self.tags[tag] = self.n
    def need(self, tag): return min(self.mx, self.n - self.tags[tag])

class G:
    def __init__(self, diag=False, zoom=None):
        self.zoom = zoom
        self.l = []; self.uid = 0; self.diag = diag; self.clk = 's_memtime' if diag == 'cyc' else 's_memrealtime'
        self.vm = Cnt(63); self.lg = Cnt(15)
    def __call__(self, s):
        for x in s.strip('\n').split('\n'):
            x = x.strip()
            if x: self.l.append('    ' + x)
    def label(self, n): self.l.append(n + ':')
    def new(self, p='L'):
        self.uid += 1; return '%s%d' % (p, self.uid)
    def vmem(self, s, tag=None): self(s); self.vm.issue(tag)
    def lds(self, s, tag=None): self(s); self.lg.issue(tag)
    def wvm(self, tag): self('s_waitcnt vmcnt(%d)' % self.vm.need(tag))
    def wlg(self, tag): self('s_waitcnt lgkmcnt(%d)' % self.lg.need(tag))
    def z(self, name):
        if self.zoom and name in self.zoom:
            i = self.zoom.index(name)
            return 's_memtime s[%d:%d]' % (SSTAMP + 2 * i, SSTAMP + 2 * i + 1)
        return ''
    def zw(self, name):
        x = self.z(name)
        if x: self('s_waitcnt vmcnt(0)\n' + x)
    def stamp(self, i):
        if self.zoom: self(self.z('s%d' % i))
        elif self.diag and (self.diag is True or self.diag == 'cyc' or i == 13 or self.diag == 'amp%d' % i):
            self('%s s[%d:%d]\ns_waitcnt lgkmcnt(0)\ns_mov_b32 s%d, s%d' % (self.clk, 100, 101, SSTAMP + i, 100))

SQ, SK, SV, SSH, SSSM, SW1, SW2, SOUT, SWS, SDBG = 4, 8, 12, 16, 20, 24, 28, 32, 36, 40
SDP = 44
sG, sR, sW, sTAG, sD, sXCC = 46, 47, 48, 49, 50, 51
sT0, sT1, sT2, sT3, sT4, sT5 = 52, 53, 54, 55, 56, 57
sO1, sO2, sO3 = 58, 59, 60
sFLG = 61
sSPIN = 62
sSH = 44
sFT, sT = 63, 64
sM0 = 65
sX, sCH = 66, 67
sMK = 68
sPC = 70
sKap = 72
sNEED = 73
sDV, sDM = 74, 75
sP = 92
sURB, sQQ, sQ3, sTW1, sTW2, sQ4, sFL, sPH = 92, 93, 94, 95, 96, 97, 98, 99
sKV = 45
sF3, sPP = 16, 70
sUS, sC1, sC2 = 15, 19, 18
sRT, sDT, sSB, sRS, sRI, sHB, sFA = 8, 9, 10, 11, 12, 13, 14
SW1T = 4
SSTAMP = 76

def v(i, n=1): return 'v%d' % i if n == 1 else 'v[%d:%d]' % (i, i + n - 1)
def a(i, n=1): return 'a%d' % i if n == 1 else 'a[%d:%d]' % (i, i + n - 1)
def srd(i): return 's[%d:%d]' % (i, i + 3)

def merge(main, fill, first=0, last=None):
    if last is None: last = len(main) - 1
    n = last - first + 1
    out = []; fi = 0
    for i, m in enumerate(main):
        out.append(m)
        if first <= i <= last:
            tgt = (len(fill) * (i - first + 1) + n - 1) // n
            while fi < tgt: out.append(fill[fi]); fi += 1
    out += fill[fi:]
    return out

def round_bf(g, r):
    g('v_cvt_pk_bf16_f32 %s, %s, %s\nv_lshlrev_b32 %s, 16, %s' % (v(r), v(r), v(r), v(r), v(r)))

def allreduce(g, regs, tmp):
    for ctl in ('quad_perm:[1,0,3,2]', 'quad_perm:[2,3,0,1]', 'row_half_mirror', 'row_mirror'):
        g('s_nop 1')
        for r in regs: g('v_add_f32_dpp %s, %s, %s %s row_mask:0xf bank_mask:0xf' % (v(r), v(r), v(r), ctl))
    for op in ('v_permlane16_swap_b32', 'v_permlane32_swap_b32'):
        for r, t in zip(regs, tmp): g('v_mov_b32 %s, %s' % (v(t), v(r)))
        g('s_nop 1')
        for r, t in zip(regs, tmp): g('%s %s, %s' % (op, v(r), v(t)))
        g('s_nop 1')
        for r, t in zip(regs, tmp): g('v_add_f32 %s, %s, %s' % (v(r), v(r), v(t)))

SPIN_MAX = 1 << 20
CODE_BYTES = 23808
SSMP = 4352
SSMC = 64 + 4 * SSMP + 192
OPT = dict(urtouch='p', w1first=0, w1pace=(42, 140), w1conv=0, w1ahead=8, nh0=12, htouch='w3', htfl='', nH=12, w1fl='', urfl='', Hfl='', cq2=0, cq3=84, qd=2, apre=3, qtouch=1, cf=5, ct1=-3, ct1b=4, ct2=6, j0=16, agg=1, slp=0, pw=(1, 4), mj=(0, 27), e0=2, e1=18, fa=25, xn=100, t2pos=4, cln=-1, cpe=0, cpn=0, zw=0, nhb=6, cpw=0, hj=(0, 28), hpos=20, hlines=24, hst='nt', wbn=-1, wbr=31, earlyH=1, mj1=16, htst='', xbst='', ost='nt', dense=0, cw=34, cp0=24, w1warm=0, ssmpos=0, urpos=0)

def poll_pair(g, offL, offG, need_sgpr, vaddr, vtmp):
    L = g.new('Lp'); D = g.new('Lpd')
    g('s_lshl_b32 s%d, s%d, 7' % (sT0, sG))
    g('v_and_b32 %s, 31, v1\nv_lshlrev_b32 %s, 2, %s' % (v(vaddr), v(vaddr), v(vaddr)))
    g('v_mov_b32 %s, %d\nv_cmp_lt_u32 vcc, 31, v1\ns_nop 1\nv_cndmask_b32 %s, %d, %s, vcc' % (v(vtmp), offG - offL, v(vtmp), 0, v(vtmp)))
    g('v_add_u32 %s, %s, %s\ns_add_u32 s%d, s%d, %d\ns_mov_b32 s%d, 0' % (v(vaddr), v(vaddr), v(vtmp), sT0, sT0, offL, sSPIN))
    g.label(L)
    g('buffer_load_dword %s, %s, %s, s%d offen sc1' % (v(vtmp), v(vaddr), srd(SWS), sT0))
    g('s_add_u32 s%d, s%d, 1\ns_cmp_gt_u32 s%d, %d\ns_cbranch_scc1 %s' % (sSPIN, sSPIN, sSPIN, SPIN_MAX, D))
    g('s_waitcnt vmcnt(0)')
    g('v_cmp_eq_u32 vcc, s%d, %s' % (sTAG, v(vtmp)))
    g('s_nop 0\ns_or_b32 s%d, vcc_lo, vcc_hi\ns_and_b32 s%d, s%d, s%d\ns_cmp_lg_u32 s%d, s%d\ns_cbranch_scc1 %s' % (sT1, sT1, sT1, need_sgpr, sT1, need_sgpr, L))
    g.label(D)
    g('s_waitcnt vmcnt(0)')

def put_flag(g, off_sgpr, flavour, second=None):
    L = g.new('Lf')
    g('s_cmp_lg_u32 s%d, 0\ns_cbranch_scc1 %s' % (sW, L))
    g('v_mov_b32 v14, s%d\nv_mov_b32 v15, 0\ns_mov_b64 exec, 1' % sTAG)
    g('buffer_store_dword v14, v15, %s, s%d offen %s' % (srd(SWS), off_sgpr, flavour))
    if second is not None: g('buffer_store_dword v14, v15, %s, s%d offen sc1' % (srd(SWS), second))
    g('s_mov_b64 exec, -1')
    g.label(L)

def ssm_loads(g):
    for i in range(2):
        g.vmem('buffer_load_dwordx4 %s, v5, %s, s%d offen offset:%d nt' % (v(184 + 8 * i, 4), srd(SSSM), sDV, 1024 * i))
        g.vmem('buffer_load_dwordx2 %s, v5, %s, s%d offen offset:%d nt' % (v(188 + 8 * i, 2), srd(SSSM), sDV, 1024 * i + 16))

def s1tail(g, pos):
    if OPT['ssmpos'] == pos:
        ssm_loads(g)
        g.vmem('global_load_ushort v112, v113, s[%d:%d]' % (SDP, SDP + 1), 'ssm')
    if OPT['urpos'] == pos:
        if OPT['urtouch']:
            g('v_and_b32 v75, 15, v1\nv_lshlrev_b32 v73, 7, v75\nv_add_u32 v73, s%d, v73\ns_lshl_b32 s%d, s%d, 4\nv_add_u32 v75, s%d, v75\nv_lshlrev_b32 v75, 12, v75\nv_add_u32 v75, s%d, v75' % (sQQ, sO3, sW, sO3, sURB))
            g('v_cmp_gt_u32 vcc, %d, v1\ns_nop 1\nv_cndmask_b32 v75, v73, v75, vcc' % (16 if OPT['qtouch'] else 64))
            g.vmem('buffer_load_dword v10, v75, %s, 0 offen %s' % (srd(SWS), OPT['urtouch'].replace('p', '')))

def prologue(g):
    if OPT['cpe']: g('s_getpc_b64 s[%d:%d]\nv_min_u32 v2, %d, v0\nv_lshlrev_b32 v2, 7, v2\nglobal_load_dword v10, v2, s[%d:%d] offset:64' % (sPC, sPC + 1, OPT['cpe'] - 1, sPC, sPC + 1))
    for (s, off) in ((SQ, 0), (SK, 8), (SV, 16), (SWS, 88)): g('s_load_dwordx2 s[%d:%d], s[0:1], %d' % (s, s + 1, off))
    g('s_cmp_ge_u32 s2, 256\ns_cbranch_scc1 L_exit')
    if g.diag: g(('s_memrealtime' if g.zoom else g.clk) + ' s[100:101]')
    g('v_and_b32 v1, 63, v0\nv_lshrrev_b32 v2, 6, v0\ns_and_b32 s%d, s2, 7\nv_readfirstlane_b32 s%d, v2\ns_lshr_b32 s%d, s2, 3' % (sG, sW, sR))
    g('s_mov_b32 s%d, 0x200000\ns_mov_b32 s%d, 0x20000' % (SQ + 2, SQ + 3))
    g('s_mov_b64 s[%d:%d], s[%d:%d]\ns_mov_b64 s[%d:%d], s[%d:%d]\ns_mov_b32 s%d, 0x%x\ns_mov_b32 s%d, s%d' % (SK + 2, SK + 3, SQ + 2, SQ + 3, SV + 2, SV + 3, SQ + 2, SQ + 3, SWS + 2, WS_BYTES, SWS + 3, SQ + 3))
    g('v_lshlrev_b32 v5, 4, v1')
    g('s_lshl_b32 s%d, s%d, 5\ns_add_u32 s%d, s%d, s%d\ns_lshl_b32 s%d, s%d, 2\ns_add_u32 s%d, s%d, s%d\ns_lshl_b32 s%d, s%d, 11'
      % (sT2, sG, sT2, sT2, sR, sT3, sT2, sT3, sT3, sW, sT3, sT3))
    g('v_lshrrev_b32 v6, 3, v1\nv_lshlrev_b32 v6, 10, v6\nv_and_b32 v7, 7, v1\nv_lshl_add_u32 v6, v7, 4, v6')
    g('s_lshl_b32 s%d, s%d, 2\ns_add_u32 s%d, s%d, s%d\ns_lshl_b32 s%d, s%d, 14\ns_lshl_b32 s%d, s%d, 7\ns_add_u32 s%d, s%d, s%d\ns_add_u32 s%d, s%d, 7168'
      % (sT4, sR, sT4, sT4, sW, sT4, sT4, sT1, sG, sT4, sT4, sT1, sT5, sT4))
    g('v_add_u32 v7, s%d, v6\nv_subrev_u32 v7, 3072, v7\ns_lshl_b32 s%d, s%d, 13\ns_mov_b32 m0, s%d' % (sT4, sT0, sW, sT0))
    g('s_waitcnt lgkmcnt(0)')
    if g.diag and not g.zoom: g('s_mov_b32 s%d, s100' % SSTAMP)
    g(g.z('s0'))
    g.vmem('buffer_load_dwordx4 v[36:39], v5, %s, s%d offen nt' % (srd(SQ), sT3))
    g.vmem('buffer_load_dwordx4 v[40:43], v5, %s, s%d offen offset:1024 nt' % (srd(SQ), sT3))
    g.vmem('buffer_load_dword v74, off, %s, 0 offset:%d' % (srd(SWS), WS_EPOCH), 'qrow')
    for (s, off) in ((SSH, 24), (SSSM, 32), (SDP, 40), (SW1, 56), (SW2, 64), (SOUT, 72), (SDBG, 80)): g('s_load_dwordx2 s[%d:%d], s[0:1], %d' % (s, s + 1, off))
    g('s_mov_b64 exec, 0xffffff')
    g.vmem('buffer_load_dwordx4 v7, %s, 0 offen nt lds' % srd(SK))
    g('s_mov_b64 exec, -1\ns_add_u32 m0, m0, 384\n' + ('s_nop 0' if OPT['cpe'] else 's_getpc_b64 s[%d:%d]' % (sPC, sPC + 1)))
    g.vmem('buffer_load_dwordx4 v6, %s, s%d offen nt lds' % (srd(SK), sT4))
    g.vmem('buffer_load_dwordx4 v6, %s, s%d offen offset:1024 nt lds' % (srd(SK), sT5))
    g('s_add_u32 m0, m0, %d\ns_lshl_b32 s%d, s%d, 3' % (4096 - 384, sT1, sR))
    g.vmem('buffer_load_dwordx4 v6, %s, s%d offen nt lds' % (srd(SV), sT4))
    g.vmem('buffer_load_dwordx4 v6, %s, s%d offen offset:1024 nt lds' % (srd(SV), sT5))
    g('v_add_u32 v2, s%d, v1\nv_cmp_gt_u32 vcc, %d, v1\ns_getreg_b32 s%d, hwreg(HW_REG_XCC_ID)\ns_add_u32 m0, m0, 2048\nv_cndmask_b32 v2, v2, v1, vcc\nv_lshlrev_b32 v2, 7, v2\nv_min_u32 v2, %d, v2' % (sT1, 0 if OPT['cpe'] else OPT['cp0'], sXCC, CODE_BYTES))
    for (s, n) in ((SSH, 4096), (SSSM, 4096), (SW1, 512 * 3584), (SW2, 1792 * 1024), (SOUT, 0x200000), (SDBG, 256)):
        g('s_mov_b32 s%d, 0x%x\ns_mov_b32 s%d, 0x20000' % (s + 2, n, s + 3))
    g('s_and_b32 s%d, s%d, 15\ns_or_b32 s%d, s%d, 0x80\nv_mov_b32 v8, s%d\nv_mov_b32 v9, s%d\nv_and_b32 v3, 31, v1\ns_add_u32 s%d, s%d, %d' % (sXCC, sXCC, sXCC, sXCC, sXCC, sT2, sX, sT0, LX))
    g('v_lshlrev_b32 v4, 4, v3\ns_lshl_b32 s%d, s%d, 9\nv_add_u32 v4, s%d, v4\ns_lshl_b32 s%d, s%d, 5\ns_cmp_lg_u32 s%d, 0\ns_waitcnt lgkmcnt(0)' % (sT1, sG, sT1, sT1, sG, sW))
    g('s_cbranch_scc1 L_nocen\ns_mov_b64 exec, 0x%x\nglobal_load_dword v10, v2, s[%d:%d]\ns_mov_b64 exec, 1\nbuffer_store_byte v8, v9, %s, 0 offen\ns_mov_b64 exec, -1' % (0xff000000 if OPT['cpe'] else (1 << (OPT['cp0'] + 8)) - 1, sPC, sPC + 1, srd(SDBG)))
    if OPT['cpn']: g.l = [x for x in g.l if 'global_load_dword v10, v2' not in x]
    g.label('L_nocen')
    g.vmem('buffer_load_dwordx4 v[44:47], v4, %s, 0 offen' % srd(SSH))
    g.vmem('buffer_load_ubyte v14, v3, %s, s%d offen sc1' % (srd(SDBG), sT1), 'kv')
    g.vmem('buffer_load_dwordx4 v6, %s, s%d offen nt lds' % (srd(SQ), sT4))
    g.vmem('buffer_load_dwordx4 v6, %s, s%d offen offset:1024 nt lds' % (srd(SQ), sT5), 'qtile')
    g('s_lshl_b32 s%d, s%d, 6\ns_lshl_b32 s%d, s%d, 1\ns_add_u32 s%d, s%d, s%d\ns_lshr_b32 s%d, s%d, 1\ns_add_u32 s%d, s%d, s%d' % (sT3, sG, sT1, sR, sT3, sT3, sT1, sT1, sW, sT3, sT3, sT1))
    g('s_mul_i32 s%d, s%d, %d\ns_add_u32 s%d, s%d, %d\ns_lshl_b32 s%d, s%d, 1\nv_mov_b32 v8, s%d\nv_mov_b32 v9, 0\ns_lshl_b32 s%d, s%d, 12' % (sCH, sT1, 4 * SSMQ, sCH, sCH, LSSM, sT1, sT3, sT1, sT3, sT3))
    g('s_add_u32 s%d, s%d, s%d\ns_addc_u32 s%d, s%d, 0' % (SSSM, SSSM, sT3, SSSM + 1, SSSM + 1))
    g('s_and_b32 s%d, s%d, 1\ns_lshl_b32 s%d, s%d, 11' % (sKap, sW, sT1, sKap))
    g('s_mov_b32 s%d, s%d\nv_mov_b32 v113, v8' % (sDV, sT1))
    g('s_lshl_b32 s%d, s%d, 20\ns_sub_u32 s%d, 31, s%d\ns_lshl_b32 s%d, s%d, 7\ns_add_u32 s%d, s%d, s%d\ns_add_u32 s%d, s%d, 0x%x'
      % (sT3, sG, sT1, sR, sT1, sT1, sURB, sT3, sT1, sURB, sURB, WS_GRP + GUR))
    g('s_lshl_b32 s%d, s%d, 7\ns_lshl_b32 s%d, s%d, 2\ns_add_u32 s%d, s%d, s%d' % (sT3, sG, sT1, sR, sFLG, sT3, sT1))
    g(g.z('p_is'))
    g('s_mul_i32 s%d, s%d, 9216\ns_add_u32 s%d, s%d, s%d\nv_mov_b32 v12, 0\nv_lshlrev_b32 v11, 2, v1\nv_add_u32 v13, s%d, v11\nv_add_u32 v11, s%d, v11' % (sT1, sKap, sT1, sT1, sCH, sCH, sT1))
    g('s_mul_i32 s%d, s%d, 136\nv_add_u32 v9, s%d, v11\ns_lshl_b32 s%d, s%d, 7\nv_add_u32 v11, s%d, v11\ns_mov_b64 exec, 0xffff' % (sT1, sKap, sT1, sT1, sKap, sT1))
    g('ds_write_b32 v13, v12\ns_mov_b64 exec, 0xffffffff\nds_write_b32 v9, v12 offset:%d\nds_write_b32 v11, v12 offset:%d\ns_mov_b64 exec, -1' % (ssm_blk(0) + 4096, ssm_blk(1) + 40 + 4096))
    g('s_lshl_b32 s%d, s%d, 11\ns_add_u32 s%d, s%d, s%d\nv_add_u32 v111, s%d, v5' % (sT1, sKap, sT1, sT1, sCH, sT1))
    g('s_lshl_b32 s%d, s%d, 2\ns_add_u32 s%d, s%d, s%d\ns_lshl_b32 s%d, s%d, 4\ns_add_u32 s%d, s%d, 0x%x' % (sQ3, sT2, sQ3, sQ3, sW, sQ3, sQ3, sQ3, sQ3, WS_ST))
    g('s_lshl_b32 s%d, s%d, 20\ns_lshl_b32 s%d, s%d, 13\ns_add_u32 s%d, s%d, s%d\ns_lshl_b32 s%d, s%d, 11\ns_add_u32 s%d, s%d, s%d\ns_add_u32 s%d, s%d, 0x%x' % (sT1, sG, sT2, sR, sQQ, sT1, sT2, sT1, sW, sQQ, sQQ, sT1, sQQ, sQQ, WS_GRP + GQQ))
    g('v_lshrrev_b32 v8, 5, v1\nv_lshlrev_b32 v8, 10, v8\nv_lshl_add_u32 v8, v3, 2, v8\nv_add_u32 v108, s%d, v8\nv_add_u32 v109, 1024, v108\nv_add_u32 v110, 4096, v108' % sT0)
    g('v_mul_u32_u24 v8, 144, v3\nv_lshrrev_b32 v9, 5, v0\nv_sub_u32 v9, 7, v9\nv_lshl_add_u32 v8, v9, 4, v8\nv_add_u32 v118, %d, v8' % LX)
    g('v_bfe_u32 v8, v1, 3, 1\nv_lshlrev_b32 v8, 5, v8\nv_lshrrev_b32 v9, 4, v1\nv_add_u32 v8, v8, v9\ns_lshl_b32 s%d, s%d, 3\nv_add_u32 v8, s%d, v8' % (sT1, sW, sT1))
    g('v_mul_u32_u24 v8, 144, v8\nv_and_b32 v9, 7, v1\nv_lshl_add_u32 v8, v9, 4, v8\nv_add_u32 v119, %d, v8' % LX)
    g('v_lshrrev_b32 v8, 3, v1\ns_lshl_b32 s%d, s%d, 4\nv_add_u32 v8, s%d, v8\nv_lshlrev_b32 v120, 12, v8\nv_lshl_add_u32 v120, v9, 4, v120' % (sT1, sW, sT1))
    g('v_lshlrev_b32 v7, 15, v8\nv_lshl_add_u32 v7, v9, 4, v7\ns_lshl_b32 s%d, s%d, 16\nv_and_b32 v9, 1, v1\nv_lshrrev_b32 v4, 1, v1\nv_lshlrev_b32 v4, 10, v4\nv_lshl_add_u32 v4, v9, 4, v4\nv_add_u32 v4, s%d, v4' % (sT1, sW, sT1))
    g('v_and_b32 v9, 3, v1\nv_lshrrev_b32 v11, 3, v1\nv_lshl_add_u32 v11, v11, 2, v9\nv_bfe_u32 v15, v1, 2, 1\nv_lshlrev_b32 v116, 6, v11\nv_lshlrev_b32 v11, 5, v11\nv_lshl_add_u32 v11, v15, 4, v11')
    g('s_mul_i32 s%d, s%d, 6144\ns_add_u32 s%d, s%d, %d\nv_add_u32 v114, s%d, v11\nv_add_u32 v116, s%d, v116' % (sM0, sW, sM0, sM0, LQS, sM0, sM0))
    g('v_lshlrev_b32 v12, 3, v8\nv_lshl_add_u32 v12, v9, 1, v12\nv_and_b32 v11, 3, v8\nv_xor_b32 v12, v12, v11\nv_lshlrev_b32 v12, 4, v12\nv_lshl_add_u32 v12, v15, 14, v12\nv_add_u32 v12, %d, v12\nv_xor_b32 v13, 16, v12' % LX)
    g('v_and_b32 v8, 15, v1\nv_lshrrev_b32 v9, 4, v1\nv_lshl_add_u32 v11, v8, 2, v9\nv_bfe_u32 v15, v1, 1, 2\nv_xor_b32 v11, v11, v15\nv_lshlrev_b32 v127, 4, v11\nv_add_u32 v127, s%d, v127' % sX)
    g('v_lshlrev_b32 v2, 6, v9\nv_lshlrev_b32 v11, 5, v8\nv_sub_u32 v2, v2, v11')
    g('s_lshl_b32 s%d, s%d, 8\ns_add_u32 s%d, s%d, s%d\ns_add_u32 s%d, s%d, 512\nv_add_u32 v2, s%d, v2' % (sT1, sKap, sT1, sT1, sX, sT1, sT1, sT1))
    g('v_and_b32 v15, 1, v9\nv_lshlrev_b32 v3, 4, v15\nv_sub_u32 v3, v3, v11')
    g('s_lshl_b32 s%d, s%d, 11\ns_sub_u32 s%d, s%d, s%d\ns_add_u32 s%d, s%d, %d\nv_add_u32 v3, s%d, v3' % (sT1, sKap, sT1, sX, sT1, sT1, sT1, 2 * (2032 - 768), sT1))
    g('v_lshl_add_u32 v15, v15, 3, v8\nv_lshlrev_b32 v126, 1, v15\nv_add_u32 v126, %d, v126' % 34)
    g('v_cmp_lt_u32 vcc, 31, v1\nv_sub_u32 v15, 15, v15\nv_mov_b32 v11, 64\nv_cndmask_b32 v126, v126, 0, vcc\nv_cndmask_b32 v117, v11, v15, vcc\nv_add_u32 v126, s%d, v126' % sCH)
    g('v_add_u32 v8, 1, v8\nv_and_b32 v15, 3, v8\nv_min_u32 v11, 1, v15\nv_lshlrev_b32 v121, 3, v11\nv_and_b32 v11, 1, v15\nv_mul_u32_u24 v11, %d, v11\nv_add_u32 v121, v121, v11' % (SSMQ + 32))
    g('v_lshrrev_b32 v11, 1, v15\nv_mul_u32_u24 v11, %d, v11\nv_add_u32 v121, v121, v11' % (2 * SSMQ + 128))
    g('v_and_b32 v8, 0xfc, v8\nv_lshl_add_u32 v8, v9, 5, v8\nv_lshl_add_u32 v121, v8, 1, v121')
    g('s_lshl_b32 s%d, s%d, 8\ns_add_u32 s%d, s%d, s%d\ns_add_u32 s%d, s%d, %d\nv_add_u32 v121, s%d, v121' % (sT1, sKap, sT1, sT1, sCH, sT1, sT1, ssm_blk(0), sT1))
    g('s_mul_i32 s%d, s%d, 37\ns_lshr_b32 s%d, s%d, 8\ns_sub_u32 s%d, s%d, 28\ns_cmp_ge_u32 s%d, 28\ns_cselect_b32 s%d, s%d, s%d' % (sNEED, sR, sNEED, sNEED, sT1, sR, sR, sQ4, sT1, sNEED))
    g('s_mov_b32 s%d, s%d\ns_mov_b32 s%d, s%d\ns_mov_b32 s%d, s%d\ns_cselect_b32 s%d, 0, s%d' % (SW1T, SW1, SW1T + 1, SW1 + 1, SW1T + 2, SW1 + 2, SW1 + 2, SW1 + 2))
    g('s_mul_i32 s%d, s%d, 7\ns_sub_u32 s%d, s%d, s%d\ns_min_u32 s%d, s%d, 6\ns_and_b32 s%d, s%d, 1\ns_mul_i32 s%d, s%d, 7\ns_add_u32 s%d, s%d, s%d'
      % (sNEED, sQ4, sFL, sR, sNEED, sFL, sFL, sPH, sG, sNEED, sPH, sFT, sFL, sNEED))
    g('s_lshr_b32 s%d, s%d, 1\ns_lshl_b32 s%d, s%d, 2\ns_add_u32 s%d, s%d, s%d' % (sNEED, sG, sNEED, sNEED, sT, sNEED, sQ4))
    g('s_lshl_b32 s%d, s%d, 2\ns_add_u32 s%d, s%d, s%d\ns_mul_i32 s%d, s%d, %d\ns_mul_i32 s%d, s%d, 1792\ns_add_u32 s%d, s%d, s%d' % (sNEED, sR, sNEED, sNEED, sW, sT1, sNEED, 4 * 3584, sSPIN, sPH, sTW1, sT1, sSPIN))
    g('s_mul_i32 s%d, s%d, %d\ns_mul_i32 s%d, s%d, %d\ns_add_u32 s%d, s%d, s%d' % (sT1, sNEED, 56 * 128, sSPIN, sPH, 896 * 1024, sTW2, sT1, sSPIN))
    g('v_lshrrev_b32 v8, 4, v1\nv_mul_u32_u24 v8, 3584, v8\nv_and_b32 v9, 15, v1\nv_min_u32 v9, 13, v9\nv_lshl_add_u32 v6, v9, 7, v8')
    s1tail(g, 0)
    g('v_and_b32 v11, 1, v1\nv_mul_u32_u24 v11, %d, v11\nv_bfe_u32 v9, v1, 1, 1\nv_mul_u32_u24 v9, %d, v9\nv_max_u32 v11, v11, v9\nv_bfe_u32 v9, v1, 2, 1\nv_mul_u32_u24 v9, %d, v9\nv_max_u32 v11, v11, v9\ns_lshl_b32 s%d, s%d, 7\ns_add_u32 s%d, s%d, %d' % (WS_F3L - WS_F1L, WS_CNT - WS_F1L, WS_F3A - WS_F1L, sT1, sG, sT1, sT1, WS_F1L))
    g('s_lshl_b32 s%d, s%d, 20\ns_add_u32 s%d, s%d, 0x%x\ns_sub_u32 s%d, s%d, s%d\nv_lshlrev_b32 v9, 7, v1\nv_add_u32 v9, s%d, v9\nv_cmp_lt_u32 vcc, 31, v1\ns_nop 1\nv_cndmask_b32 v11, v11, v9, vcc' % (sO3, sG, sO3, sO3, WS_GRP + GRI - 4096, sO3, sO3, sT1, sO3))
    g.vmem('buffer_load_dword v10, v11, %s, s%d offen sc1' % (srd(SWS), sT1))
    if OPT['ct1'] == -5: g.vmem('buffer_load_dword a255, v6, %s, s%d offen' % (srd(SW1T), sTW1))
    if OPT['w1warm']:
        g('s_lshl_b32 s%d, s2, 2\ns_add_u32 s%d, s%d, s%d\ns_mul_i32 s%d, s%d, %d\nv_min_u32 v11, 13, v1\nv_lshlrev_b32 v11, 7, v11\ns_mov_b64 exec, 0x3fff' % (sT1, sT1, sT1, sW, sT1, sT1, 14 * 128))
        g.vmem('buffer_load_dword v10, v11, %s, s%d offen' % (srd(SW1T), sT1))
        if OPT['w1warm'] > 1: g.vmem('buffer_load_dword v10, v11, %s, s%d offen' % (srd(SW2), sT1))
        g('s_mov_b64 exec, -1')
    g('v_bfe_u32 v9, v1, 2, 2\nv_lshlrev_b32 v9, 7, v9\nv_lshrrev_b32 v11, 4, v1\nv_lshl_add_u32 v9, v11, 5, v9\nv_and_b32 v11, 3, v1\nv_lshl_add_u32 v9, v11, 3, v9\ns_add_u32 s%d, s%d, 6144\nv_add_u32 v115, s%d, v9' % (sT1, sT0, sT1))
    g('v_lshrrev_b32 v8, 4, v1\nv_bfe_u32 v9, v1, 2, 2\nv_xor_b32 v9, v9, v8\nv_mul_u32_u24 v8, 3584, v8\nv_lshl_add_u32 v8, v9, 6, v8\nv_and_b32 v9, 3, v1\nv_lshl_add_u32 v8, v9, 4, v8')
    g('s_lshl_b32 s%d, s%d, 8\ns_mul_i32 s%d, s%d, %d\ns_add_u32 s%d, s%d, s%d\nv_add_u32 v87, s%d, v8' % (sT3, sFT, sT1, sW, 4 * 3584, sT3, sT3, sT1, sT3))
    g('s_lshl_b32 s%d, s%d, 1\ns_lshr_b32 s%d, s%d, 1\ns_add_u32 s%d, s%d, s%d\ns_lshl_b32 s%d, s%d, 12\ns_lshl_b32 s%d, s%d, 20\ns_add_u32 s%d, s%d, s%d\ns_add_u32 s%d, s%d, 0x%x'
      % (sT4, sR, sT1, sW, sT1, sT1, sT4, sUS, sT1, sC1, sG, sUS, sUS, sC1, sUS, sUS, WS_GRP + GUR))
    g('s_lshl_b32 s%d, s%d, 6\ns_add_u32 s%d, s%d, s%d\ns_lshl_b32 s%d, s%d, 6' % (sT1, sG, sT4, sT4, sT1, sT4, sT4))
    g('s_lshl_b32 s%d, s%d, 5\ns_add_u32 s%d, s%d, s%d\ns_add_u32 s%d, s%d, 0x%x\ns_lshl_b32 s%d, s%d, 12\ns_add_u32 s%d, s%d, 0x%x' % (sT1, sR, sC1, sC1, sT1, sC1, sC1, WS_GRP + GQQ, sC2, sW, sC2, sC2, WS_ST))
    g('s_mov_b32 s%d, %d\ns_mov_b32 s%d, %d\ns_mov_b32 s%d, %d' % (sO1, 57344, sO2, 2 * 57344, sO3, 3 * 57344))
    if OPT['cpn'] == 2: g('s_lshl_b32 s%d, s%d, 10\ns_lshl_b32 s%d, s%d, 8\ns_add_u32 s%d, s%d, s%d\nv_and_b32 v9, 1, v1\nv_lshlrev_b32 v9, 7, v9\nv_add_u32 v9, s%d, v9\nv_min_u32 v9, %d, v9' % (sT1, sR, sT3, sW, sT1, sT1, sT3, sT1, CODE_BYTES)); g.vmem('global_load_dword v10, v9, s[%d:%d]' % (sPC, sPC + 1))
    g(g.z('p_i2'))

def ln1(g):
    X = 48
    for r in range(64, 68): g('v_mov_b32 v%d, 0' % r)
    g('v_mov_b32 v72, 0x3f803f80')
    for i in range(4):
        for row in range(2):
            g('v_dot2c_f32_bf16 v%d, v%d, v72\nv_dot2c_f32_bf16 v%d, v%d, v%d' % (64 + row, 36 + 4 * row + i, 66 + row, 36 + 4 * row + i, 36 + 4 * row + i))
    un = ['s_nop 0'] * 8
    g('s_nop 2')
    R = [64, 65, 66, 67]; T = [68, 69, 70, 71]
    for ctl in ('quad_perm:[1,0,3,2]', 'quad_perm:[2,3,0,1]', 'row_half_mirror', 'row_mirror'):
        for r in R: g('v_add_f32_dpp %s, %s, %s %s row_mask:0xf bank_mask:0xf' % (v(r), v(r), v(r), ctl))
    for k, op in enumerate(('v_permlane16_swap_b32', 'v_permlane32_swap_b32')):
        for r, t in zip(R, T): g('v_mov_b32 %s, %s' % (v(t), v(r)))
        g(un[2 + k])
        for r, t in zip(R, T): g('%s %s, %s' % (op, v(r), v(t)))
        for r, t in zip(R, T): g('v_add_f32 %s, %s, %s' % (v(r), v(r), v(t)))
    g(g.z('l1'))
    for r in R: g('v_mul_f32 v%d, 0x3b000000, v%d' % (r, r))
    g('v_fma_f32 v66, -v64, v64, v66\nv_fma_f32 v67, -v65, v65, v67\nv_max_f32 v66, 0, v66\nv_max_f32 v67, 0, v67')
    g('v_cvt_pk_bf16_f32 v64, v64, v66\nv_cvt_pk_bf16_f32 v65, v65, v67\nv_and_b32 v66, 0xffff0000, v64\nv_and_b32 v67, 0xffff0000, v65')
    g('v_add_f32 v66, 0x3727c5ac, v66\nv_add_f32 v67, 0x3727c5ac, v67\nv_cvt_pk_bf16_f32 v66, v66, v67\nv_lshlrev_b32 v64, 16, v64\nv_lshlrev_b32 v65, 16, v65')
    g('v_and_b32 v67, 0xffff0000, v66\nv_lshlrev_b32 v66, 16, v66\nv_sqrt_f32 v67, v67\nv_sqrt_f32 v66, v66')
    g(un[4]); g(un[5])
    g('v_cvt_pk_bf16_f32 v66, v66, v67\nv_and_b32 v67, 0xffff0000, v66\nv_lshlrev_b32 v66, 16, v66\nv_rcp_f32 v70, v67\nv_rcp_f32 v68, v66\nv_mov_b32 v9, 0')
    g('v_mul_f32 v71, -v65, v70\nv_mul_f32 v69, -v64, v68\nv_mov_b32 v73, 0xff')
    for k in range(4): g('s_lshr_b32 s%d, s%d, %d\nv_bfi_b32 v%d, v73, s%d, v%d' % (sT1, sTAG, 8 * k, 68 + k, sT1, 68 + k))
    g('s_mov_b64 exec, 1')
    g.vmem('buffer_store_dwordx4 v[68:71], v9, %s, s%d offen sc1' % (srd(SWS), sQ3))
    g('s_mov_b64 exec, -1')
    g(g.z('l3'))

def acopies(g):
    for i in range(2):
        d = 184 + 8 * i
        for k in range(5): g('v_alignbit_b32 v%d, v%d, v%d, 16' % (200 + k, d + k + 1, d + k))
        o = 1024 * i
        g('ds_write_b128 v111, %s offset:%d' % (v(d, 4), ssm_blk(0) + o))
        for c, r0 in ((1, 200), (2, d + 1), (3, 201)):
            base = ssm_blk(c) + SSMA[c] + o
            if r0 % 2 == 0: g('ds_write_b64 v111, %s offset:%d\nds_write_b64 v111, %s offset:%d' % (v(r0, 2), base, v(r0 + 2, 2), base + 8))
            else:
                for k in range(4): g('ds_write_b32 v111, v%d offset:%d' % (r0 + k, base + 4 * k))
        g('s_waitcnt lgkmcnt(0)')

def aread(m): return ['ds_read_b64 %s, v121 offset:%d' % (v(128 + 16 * Ql + 4 * m + 2 * i, 2), 512 * Ql + 16 * m + 8 * i) for Ql in range(8) for i in range(2)]

def abuild(g):
    for j in range(8): g('ds_read_u16 v%d, v126 offset:%d' % (104 + j, 2 * j))
    for k, x in enumerate(aread(0)):
        g(x)
        if k == 5: g('s_waitcnt lgkmcnt(6)')
        if 6 <= k < 14:
            j = k - 6
            g('v_cmp_eq_u32 vcc, %d, v117\ns_nop 1\nv_cndmask_b32 v%d, v%d, v112, vcc' % (j, 104 + j, 104 + j))
            if j & 1: g('v_lshl_or_b32 v%d, v%d, 16, v%d' % (122 + j // 2, 104 + j, 103 + j))
        if k == 13: g('s_waitcnt lgkmcnt(8)')
    for m in range(1, 1 + OPT['apre']):
        for k, x in enumerate(aread(m)):
            g(x)
            if k % 4 == 1: g('s_waitcnt lgkmcnt(10)')

def p0_compute(g):
    g.wvm('kv')
    g(g.z('p_kv'))
    s1tail(g, 2)
    for i in range(0, 8, 2): g('ds_read2_b32 %s, v108 offset0:%d offset1:%d' % (v(16 + i, 2), 32 * i, 32 * i + 32))
    g('ds_read2_b32 v[24:25], v109 offset0:0 offset1:32\nds_read_b32 v26, v109 offset:256')
    for i in range(0, 8, 2): g('ds_read2_b32 %s, v110 offset0:%d offset1:%d' % (v(28 + i, 2), 32 * i, 32 * i + 32))
    for j in range(4):
        op0 = 'v_lshlrev_b32 v%d, 16, v%d' if j % 2 == 0 else 'v_and_b32 v%d, 0xffff0000, v%d'
        g(op0 % (100 + 2 * j, 44 + j // 2)); g(op0 % (101 + 2 * j, 46 + j // 2))
    K, V, U, C = 128, 152, 168, 100
    g('s_waitcnt lgkmcnt(4)')
    for i in range(11): g('v_lshlrev_b32 v%d, 16, v%d\nv_and_b32 v%d, 0xffff0000, v%d' % (K + 2 * i, 16 + i, K + 1 + 2 * i, 16 + i))
    for i in range(8): g('v_pk_mul_f32 %s, %s, %s' % (v(U + 2 * i, 2), v(K + 2 * i, 2), v(C + 6, 2)))
    for j in (2, 1, 0):
        for i in range(8): g('v_pk_fma_f32 %s, %s, %s, %s' % (v(U + 2 * i, 2), v(K + 2 * (i + 3 - j), 2), v(C + 2 * j, 2), v(U + 2 * i, 2)))
    g('s_waitcnt lgkmcnt(0)')
    for i in range(8): g('v_lshlrev_b32 v%d, 16, v%d\nv_and_b32 v%d, 0xffff0000, v%d' % (V + 2 * i, 28 + i, V + 1 + 2 * i, 28 + i))
    for i in range(8): g('v_pk_mul_f32 %s, %s, %s' % (v(U + 2 * i, 2), v(U + 2 * i, 2), v(V + 2 * i, 2)))
    for e in range(2):
        for jj in range(4): g('v_cvt_pk_bf16_f32 v%d, v%d, v%d' % (16 + 4 * e + jj, U + 2 * (7 - 2 * jj) + e, U + 2 * (6 - 2 * jj) + e))
    g('ds_write_b128 v118, v[16:19]\nds_write_b128 v118, v[20:23] offset:%d' % (32 * 144))
    g(g.z('p_u'))
    g.wvm('qtile')
    for i in range(4): g('ds_read_b64_tr_b16 %s, v115 offset:%d' % (v(76 + 2 * i, 2), 512 * i))
    g('s_waitcnt lgkmcnt(0)\ns_barrier')
    g('ds_read_b128 v[16:19], v119\nds_read_b128 v[20:23], v119 offset:%d' % (4 * 144))

def census(g):
    L = g.new('Lc')
    g('v_cmp_ne_u32 vcc, s%d, v14\ns_cbranch_vccz L_loc' % sXCC)
    g('s_lshl_b32 s%d, s%d, 5\nv_and_b32 v9, 31, v1\ns_mov_b32 s%d, 0' % (sT0, sG, sSPIN))
    g.label(L)
    g('buffer_load_ubyte v10, v9, %s, s%d offen sc1' % (srd(SDBG), sT0))
    g('s_add_u32 s%d, s%d, 1\ns_waitcnt vmcnt(0)' % (sSPIN, sSPIN))
    g('v_cmp_ne_u32 vcc, s%d, v10\ns_cbranch_vccz L_loc' % sXCC)
    g('s_cmp_lt_u32 s%d, 6\ns_cbranch_scc1 %s\ns_branch L_glob' % (sSPIN, L))

def dma4(g, vaddr, srdreg, n, vstep, tag=None, flags=''):
    out = []
    for i in range(n):
        j = i & 3
        so = '0' if j == 0 else 's%d' % (sO1 + j - 1)
        pre = ''
        if j == 0 and i > 0:
            pre = 's_add_u32 m0, m0, 4096\nv_add_u32 %s, %d, %s\n' % (v(vaddr), vstep, v(vaddr))
        out.append(pre + 'buffer_load_dwordx4 %s, %s, %s offen offset:%d %s lds' % (v(vaddr), srd(srdreg), so, 1024 * j, flags))
    return out

def w2reg(phi):
    return a(128 + 4 * phi, 4) if phi < 32 else v(160 + 4 * (phi - 32), 4)
def w2half(phi, t):
    return a(128 + 4 * phi + 2 * t, 2) if phi < 32 else v(160 + 4 * (phi - 32) + 2 * t, 2)

def tr_addr(g, dst, tmp, pitch_sh):
    g('v_lshrrev_b32 %s, 5, v1\nv_lshlrev_b32 %s, 2, %s\nv_bfe_u32 %s, v1, 2, 2\nv_add_u32 %s, %s, %s\nv_lshlrev_b32 %s, %d, %s'
      % (v(dst), v(dst), v(dst), v(tmp), v(dst), v(dst), v(tmp), v(dst), pitch_sh, v(dst)))
    g('v_bfe_u32 %s, v1, 4, 1\nv_lshl_add_u32 %s, %s, 5, %s\nv_and_b32 %s, 3, v1\nv_lshl_add_u32 %s, %s, 3, %s'
      % (v(tmp), v(dst), v(tmp), v(dst), v(tmp), v(dst), v(tmp), v(dst)))

def body(g, loc):
    fl = '' if loc else 'sc1'
    sfx = 'a' if loc else 'b'
    g('s_add_u32 s%d, s%d, 0x8000\ns_waitcnt lgkmcnt(0)' % (sT1, sURB))
    if OPT['agg']:
        g('s_or_b32 s%d, s%d, s%d\ns_cbranch_scc1 Lci%s\ns_lshl_b32 s%d, s%d, 7\ns_add_u32 s%d, s%d, %d\nv_mov_b32 v9, 0\ns_mov_b64 exec, 1\nbuffer_store_dword v9, v9, %s, s%d offen\ns_mov_b64 exec, -1\nLci%s:' % (sT2, sR, sW, sfx, sT2, sG, sT2, sT2, WS_CNT, srd(SWS), sT2, sfx))
    g.vmem('buffer_store_dwordx4 v[16:19], v120, %s, s%d offen %s' % (srd(SWS), sURB, fl))
    g.vmem('buffer_store_dwordx4 v[20:23], v120, %s, s%d offen %s' % (srd(SWS), sT1, fl))
    g.vmem('buffer_store_dwordx4 v[76:79], v5, %s, s%d offen %s' % (srd(SWS), sQQ, fl))
    g.vmem('buffer_store_dwordx4 v[80:83], v5, %s, s%d offen offset:1024 %s' % (srd(SWS), sQQ, fl), 'p0st')
    g(g.z('p_st'))
    t1 = 'buffer_load_dword a255, v6, %s, s%d offen' % (srd(SW1T), sTW1)
    g.wvm('ssm')
    acopies(g)
    g(g.z('d0'))
    g.wvm('p0st')
    g('s_barrier\ns_add_u32 s%d, s%d, %d' % (sT2, sFLG, WS_F1L if loc else WS_F1G))
    put_flag(g, sT2, fl)
    if OPT['ct1'] == -3: g(t1 if OPT['ct1b'] < 0 else 's_mov_b64 exec, 0xffffffff\n' + t1 + '\ns_mov_b64 exec, -1')
    g(g.z('p_fl'))
    g('v_mov_b32 v16, 0\nv_mov_b32 v17, 0\nv_lshlrev_b32 v8, 3, v1\nv_add_u32 v8, s%d, v8\nds_write_b64 v8, v[16:17] offset:4096' % sX)
    abuild(g)
    g(g.z('p_ab'))
    g.stamp(2)
    g('s_mov_b32 m0, s%d\nv_mov_b32 v126, v87\nv_mov_b32 v0, v114\ns_mov_b32 s%d, s%d\ns_add_u32 s%d, s%d, 31744\ns_mov_b32 s%d, s%d' % (sX, sQQ, sC1, sURB, sC1, sQ3, sC2))
    g('s_mov_b32 s%d, -1' % sNEED)
    poll_pair(g, WS_F1L, WS_F1G, sNEED, 8, 9)
    g.stamp(3)
    g.vm = Cnt(63); g.lg = Cnt(15)
    for i in range(4): g.vmem('buffer_load_dwordx4 v5, %s, s%d offen offset:%d sc1 %s lds' % (srd(SWS), sUS, 1024 * i, OPT['urfl']), 'ur')
    g('s_waitcnt lgkmcnt(0)')
    g('s_lshl_b32 s%d, s%d, 10' % (sKV, sW))
    w1dma = []
    for i in range(32):
        pre = 's_add_u32 m0, s%d, %d\n' % (sKV, 4096 * i)
        pre += 'v_add_u32 v126, %d, v126\n' % (4 * 57344) if i and i % 4 == 0 else '@'
        w1dma.append(pre + 'buffer_load_dwordx4 v126, %s, %s offen %s lds' % (srd(SW1), '0' if i % 4 == 0 else 's%d' % (sO1 + i % 4 - 1), OPT['w1fl']))
    ring = lambda i: v(48 + 4 * (i % 8), 4)
    reads = [(pi, m) for pi in range(0, -8, -1) for m in range(4)]
    g.wvm('ur')
    g.stamp(4)
    rd = lambda i: 'ds_read_b128 %s, v2 offset:%d' % (ring(i), (reads[i][0] + 7) * 512 + 16 * reads[i][1])
    AH = 4
    lq = []
    def lds(x, tag): lq.append(tag); return x
    def lwait(tag):
        idx = [i for i, t in enumerate(lq) if t == tag]
        if not idx: return ''
        n = len(lq) - 1 - idx[-1]; del lq[:idx[-1] + 1]
        return 's_waitcnt lgkmcnt(%d)\n' % n
    for i in range(AH): g(lds(rd(i), 'B%d' % i))
    seq = []
    for i, (pi, m) in enumerate(reads):
        first = True
        for k, n in enumerate(range(-pi, 8)):
            c = '0' if i == 0 else v(16 + 4 * n, 4)
            s = 'v_mfma_f32_16x16x32_bf16 %s, %s, %s, %s' % (v(16 + 4 * n, 4), v(128 + 16 * (pi + n) + 4 * m, 4), ring(i), c)
            pre = lwait('A%d_%d' % (m, pi + n)) if pi == 0 else ''
            if first:
                pre = lwait('B%d' % i) + pre
                if i + AH < len(reads): s += '\n' + lds(rd(i + AH), 'B%d' % (i + AH))
                first = False
            if OPT['apre'] <= i < 3:
                for x in aread(i + 1)[2 * k: 2 * k + 2]: s += '\n' + lds(x, 'A%d_%d' % (i + 1, k))
            if len(lq) > 12:
                s += '\ns_waitcnt lgkmcnt(8)'; del lq[:-8]
            seq.append(pre + s)
    Q32 = lambda it, j: (8, 9, 10, 11, 14, 15, 120, 121)[j] if it == 0 else 88 + 2 * j
    qqreads = ['ds_read_b128 %s, v0 offset:%d' % (v(80 + 4 * it, 4), 1024 * it) for it in range(2)]
    qqreads += ['ds_read_b128 %s, v116 offset:%d' % (v(88 + 4 * i, 4), 2048 + 2048 * (i >> 2) + 16 * (i & 3)) for i in range(8)]
    qn = []
    for it in range(2):
        for j in range(8):
            qn.append(('v_lshlrev_b32 v%d, 16, v%d' if j % 2 == 0 else 'v_and_b32 v%d, 0xffff0000, v%d') % (Q32(it, j), 80 + 4 * it + j // 2))
            qn.append('v_fmac_f32 v%d, v%d, v%d' % (89 + 16 * it + 2 * j, Q32(it, j), 88 + 16 * it + 2 * j))
    qql = ['s_mov_b32 m0, s%d\ns_nop 0\nbuffer_load_dwordx4 v4, %s, s%d offen sc1 lds' % (sM0, srd(SWS), sQQ), 'buffer_load_dwordx4 v4, %s, s%d offen offset:1024 sc1 lds\ns_add_u32 m0, m0, 2048\ns_nop 0' % (srd(SWS), sURB)]
    qql += ['buffer_load_dwordx4 v5, %s, s%d offen offset:%d sc1 lds' % (srd(SWS), sQ3, 1024 * i) for i in range(4)]
    TB = [sT0, sT1, sT2, sT3]
    chk = ['s_and_b32 s%d, s%d, 0xff\ns_bfe_u32 s%d, s%d, 0x80008' % (TB[0], sTAG, TB[1], sTAG), 's_bfe_u32 s%d, s%d, 0x80010\ns_lshr_b32 s%d, s%d, 24' % (TB[2], sTAG, TB[3], sTAG)]
    for i in range(8):
        r = 88 + 4 * i
        chk += ['v_xor_b32 v%d, s%d, v%d' % (r + k, TB[k], r + k) for k in range(4)]
        chk += ['v_or3_b32 v8, v%d, v%d, %s' % (r, r + 1, 'v8' if i else '0'), 'v_or3_b32 v8, v%d, v%d, v8' % (r + 2, r + 3)]
    chk += ['v_and_b32 v8, 0xff, v8', 'v_cmp_ne_u32 s[%d:%d], 0, v8' % (sMK, sMK + 1)]
    NF, NC = OPT['w1first'], OPT['w1conv']
    f0, f1 = OPT['w1pace']
    cf = OPT['cf']
    t2 = 'v_min_u32 v6, 55, v1\nv_lshlrev_b32 v6, 7, v6\nbuffer_load_dword a255, v6, %s, s%d offen' % (srd(SW2), sTW2)
    t2l = t2.replace('a255', 'v200').replace('v6', 'v201')
    ev = []
    if OPT['ct1b'] >= 0:
        if OPT['ct1'] >= 0: ev.append((OPT['ct1'], 'v', 's_mov_b64 exec, 0xffffffff\n' + t1 + '\ns_not_b64 exec, 0\ns_nop 3', None))
        ev.append((OPT['ct1b'], 'v', 's_lshl_b64 exec, exec, 32\n' + t1 + '\ns_not_b64 exec, 0\ns_nop 3', None))
    elif OPT['ct1'] >= 0: ev.append((OPT['ct1'], 'v', t1, None))
    if OPT['ct2'] >= 0: ev.append((OPT['ct2'], 'v', t2, None))
    c3, cw = OPT['cq3'], OPT['cw']
    c2 = OPT['cq2']
    assert NC <= 24 and c3 + 9 + 86 // OPT['qd'] < 144 and (OPT['ct2'] < 0 or OPT['ct2'] > max(OPT['ct1'], OPT['ct1b']))
    pos = [OPT['cf'] + 5 * i for i in range(NF)] + [f0 + i * (f1 - f0) // max(1, NC - NF - 1) for i in range(NC - NF)]
    assert all(p > cw for p in pos[16:]) and not any(c2 <= p <= c2 + 4 for p in pos)
    ev += [(p, 'v', w1dma[i].replace('@', 's_nop 0\n'), 'w1c') for i, p in enumerate(pos)]
    if NC > 16: ev.append((cw, 'x', 's_barrier', None))
    ev += [(c2 + i // 2, 'v', x, 'qq') for i, x in enumerate(qql)]
    ev += [(c3, 'w', 'qq', None)] + [(c3 + i // 2, 'x', x, None) for i, x in enumerate(qqreads)] + [(c3 + 8, 'x', 's_waitcnt lgkmcnt(0)', None)]
    ev += [(c3 + 9 + i // OPT['qd'], 'x', x, None) for i, x in enumerate(chk + qn)]
    ev.sort(key=lambda e: e[0])
    for i, m in enumerate(seq):
        g(g.z('c%d' % i))
        g(m)
        for (sl, kind, x, tag) in ev:
            if sl != i: continue
            if kind == 'v': g.vmem(x, tag)
            elif kind == 'w': g.wvm(x)
            elif kind == 'x': g(x)
    for i in range(4): g('ds_read_b128 %s, v3 offset:%d' % (ring(i), (3 - i) * 512))
    Lk = 'Lk1' + sfx; Lj = 'Lkj' + sfx
    g('s_cmp_lg_u32 s%d, 0\ns_cbranch_scc1 %s' % (sKap, Lk))
    for kap in range(2):
        if kap: g.label(Lk)
        for i in range(4):
            g('s_waitcnt lgkmcnt(%d)\nv_mfma_f32_16x16x32_bf16 %s, v[122:125], %s, %s' % (3 - i, v(16 + 4 * (4 * kap + i), 4), ring(i), v(16 + 4 * (4 * kap + i), 4)))
        if not kap: g('s_branch %s' % Lj)
    g.label(Lj)
    Ls = 'Lst' + sfx; Lo = 'Lsto' + sfx
    g('s_mov_b32 s%d, 0' % sSPIN)
    g.label(Ls)
    g('s_cmp_eq_u64 s[%d:%d], 0\ns_cbranch_scc1 %s' % (sMK, sMK + 1, Lo))
    g('s_add_u32 s%d, s%d, 1\ns_cmp_gt_u32 s%d, %d\ns_cbranch_scc1 %s' % (sSPIN, sSPIN, sSPIN, SPIN_MAX, Lo))
    g('s_sleep 4')
    for x in qql: g(x)
    g('v_and_b32 v8, 3, v1\nv_lshrrev_b32 v9, 3, v1\nv_lshl_add_u32 v8, v9, 2, v8\nv_lshlrev_b32 v8, 6, v8\nv_add_u32 v116, s%d, v8\ns_waitcnt vmcnt(0)' % sM0)
    for x in qqreads: g(x)
    g('s_waitcnt lgkmcnt(0)')
    for x in chk + qn: g(x)
    g('s_branch %s' % Ls)
    g.label(Lo)
    g('s_nop 4')
    g.stamp(5)
    for n in range(8): g('ds_write_b128 v127, %s offset:%d' % (v(16 + 4 * n, 4), 1024 * n))
    g('s_waitcnt vmcnt(0)')
    g(g.z('e1'))
    g('s_waitcnt lgkmcnt(0)\ns_barrier')
    g(g.z('e2'))
    for it in range(2):
        for kap in range(2):
            g('ds_read_b128 %s, v12 offset:%d' % (v(16 + 16 * it + 8 * kap, 4), 8192 * kap + 1024 * it))
            g('ds_read_b128 %s, v13 offset:%d' % (v(20 + 16 * it + 8 * kap, 4), 8192 * kap + 1024 * it))
    g('s_add_u32 s%d, s%d, 0x%x\ns_add_u32 s%d, s%d, 0x40000' % (sT4, sT4, WS_HT, sT3, sT4))
    for it in range(2):
        g('s_waitcnt lgkmcnt(%d)' % (4 - 4 * it))
        b = 16 + 16 * it
        for j in range(0, 8, 2): g('v_pk_add_f32 %s, %s, %s' % (v(b + j, 2), v(b + j, 2), v(b + 8 + j, 2)))
        for j in range(8): g('v_fmac_f32 v%d, v%d, v%d' % (Q32(it, j), 89 + 16 * it + 2 * j, b + j))
        for j in range(4): g('v_cvt_pk_bf16_f32 v%d, v%d, v%d' % (b + j, Q32(it, 2 * j), Q32(it, 2 * j + 1)))
        g('buffer_store_dwordx4 %s, v7, %s, s%d offen sc1 %s' % (v(b, 4), srd(SWS), sT4 if it == 0 else sT3, OPT['htst']))
    g(g.z('e3'))
    def g2setup():
        keep = g.l; g.l = []
        tr_addr(g, 2, 12, 6)
        g('s_lshl_b32 s%d, s%d, 20\ns_add_u32 s%d, s%d, 0x%x' % (sDM, sG, sDM, sDM, WS_GRP))
        g('s_lshr_b32 s%d, s%d, 3\ns_and_b32 s%d, s%d, 7\ns_lshr_b32 s%d, s%d, 1\ns_lshl_b32 s%d, s%d, 2\ns_add_u32 s%d, s%d, s%d\ns_lshl_b32 s%d, s%d, 2\ns_add_u32 s%d, s%d, s%d'
          % (sRT, sR, sDT, sR, sT1, sG, sT1, sT1, sT1, sT1, sRT, sT1, sT1, sSB, sT1, sW))
        g('s_lshl_b32 s%d, s%d, 15\ns_lshl_b32 s%d, s%d, 12\ns_add_u32 s%d, s%d, s%d\ns_lshl_b32 s%d, s%d, 11\ns_add_u32 s%d, s%d, s%d\ns_add_u32 s%d, s%d, 0x%x'
          % (sRS, sSB, sT1, sDT, sRS, sRS, sT1, sT1, sPH, sRS, sRS, sT1, sRS, sRS, WS_HT))
        g('s_lshl_b32 s%d, s%d, 12\ns_add_u32 s%d, s%d, 81920' % (sT5, sW, sT5, sT5))
        g('v_add_u32 v170, s%d, v2' % sT5)
        tr_addr(g, 3, 8, 7)
        g('v_bfe_u32 v8, v1, 3, 1\nv_xor_b32 v8, s%d, v8\nv_lshl_add_u32 v176, v8, 6, v3\nv_xor_b32 v173, 64, v176' % sPH)
        g('v_add_u32 v172, %d, v173\nv_add_u32 v174, 0x10000, v173\nv_add_u32 v175, %d, v176\nv_add_u32 v177, 0x10000, v176' % (LX, LX))
        g('v_and_b32 v8, 31, v1\nv_lshlrev_b32 v171, 3, v8\nv_mul_u32_u24 v179, 80, v8\nv_lshrrev_b32 v9, 5, v1\nv_lshl_add_u32 v179, v9, 3, v179\nv_add_u32 v179, s%d, v179' % sT5)
        g('v_lshrrev_b32 v8, 2, v1\nv_and_b32 v9, 3, v1\nv_mul_u32_u24 v180, 80, v8\nv_lshl_add_u32 v180, v9, 4, v180\nv_add_u32 v180, s%d, v180\nv_lshlrev_b32 v181, 10, v8\nv_lshl_add_u32 v181, v9, 4, v181' % sT5)
        g('s_lshl_b32 s%d, s%d, 3\ns_lshl_b32 s%d, 0x7f, s%d\ns_lshl_b32 s%d, s%d, 3\ns_add_u32 s%d, s%d, s%d\ns_lshl_b32 s%d, s%d, 2\ns_lshl_b32 s%d, s%d, 7\ns_add_u32 s%d, s%d, s%d' % (sT1, sRT, sNEED, sT1, sF3, sQ4, sF3, sF3, sFL, sF3, sF3, sT1, sG, sF3, sF3, sT1))
        g('s_lshl_b32 s%d, s%d, 2\ns_add_u32 s%d, s%d, s%d\ns_mul_i32 s%d, s%d, 57344\ns_add_u32 s%d, s%d, s%d\ns_lshl_b32 s%d, s%d, 8\ns_add_u32 s%d, s%d, s%d\ns_add_u32 s%d, s%d, 0x%x'
          % (sRI, sRT, sRI, sRI, sW, sHB, sRI, sHB, sHB, sDM, sRI, sRI, sRI, sRI, sDM, sRI, sRI, GRI))
        g('v_and_b32 v178, 31, v1\nv_lshlrev_b32 v178, 2, v178\nv_mov_b32 v9, %d\nv_cmp_lt_u32 vcc, 31, v1\ns_lshl_b32 s%d, s%d, 7\ns_cmp_lt_u32 s%d, 2\nv_cndmask_b32 v9, 0, v9, vcc\nv_add_u32 v178, v178, v9'
          % (WS_F3G - WS_F3L, sFA, sG, sW))
        g('s_cselect_b32 s%d, %d, 0\ns_add_u32 s%d, s%d, s%d\ns_add_u32 s%d, s%d, %d' % (sT1, WS_F3A - WS_F3L if OPT['earlyH'] else 0, sFA, sFA, sT1, sFA, sFA, WS_F3L))
        out = [x.strip() for x in g.l]; g.l = keep
        return out
    for x in g2setup(): g(x)
    tr_addr(g, 3, 8, 8)
    g('s_lshl_b32 s%d, s%d, 1\nv_bfe_u32 v8, v1, 2, 2\nv_xor_b32 v8, s%d, v8\nv_lshl_add_u32 v8, v8, 6, v3\nv_xor_b32 v9, 64, v8\nv_add_u32 v10, 0x10000, v8\nv_add_u32 v11, 0x10000, v9' % (sT0, sKap, sT0))
    g('s_lshr_b32 s%d, s%d, 1\ns_lshl_b32 s%d, s%d, 6\nv_xor_b32 v8, s%d, v8\nv_xor_b32 v9, s%d, v9\nv_xor_b32 v10, s%d, v10\nv_xor_b32 v11, s%d, v11' % (sSH, sW, sT0, sSH, sT0, sT0, sT0, sT0))
    for i in range(4): g('v_mov_b32 v%d, 0x3f803f80' % (112 + i))
    def csum(j): return ['v_mfma_f32_32x32x16_bf16 v[80:95], %s, v[112:115], %s' % (a(8 * j, 4), '0' if j == 0 else 'v[80:95]')]
    def w1step(j):
        for i in range(2):
            for t in range(2):
                g('ds_read_b64_tr_b16 %s, v%d offset:%d' % (a(8 * j + 4 * i + 2 * t, 2), 8 + i + 2 * (j >> 4), 4096 * (j & 15) + 2048 * t))
    if OPT['ct1'] == -6: g(t1.replace('a255', 'v200'))
    if OPT['ct2'] == -6: g(t2l)
    NX = (OPT['ct1'] == -6) + (OPT['ct2'] == -6)
    NA = min(32 - NC, OPT['w1ahead'])
    for x in w1dma[NC:NC + NA]: g(x.replace('@', 's_nop 0\n'))
    J0 = min(NC // 8 * 8, OPT['j0'])
    for j in range(J0):
        w1step(j)
        g('s_waitcnt lgkmcnt(8)')
        if j >= 2:
            for x in csum(j - 2): g(x)
    g('s_waitcnt vmcnt(%d)' % (NA + NX))
    NA += NC
    g(g.z('e4'))
    g('s_barrier')
    g('s_lshl_b32 s%d, s%d, 7\ns_lshl_b32 s%d, s%d, 2\ns_add_u32 s%d, s%d, s%d\ns_add_u32 s%d, s%d, %d' % (sT2, sG, sT1, sR, sT2, sT2, sT1, sT2, sT2, WS_F2))
    if loc and OPT['agg']:
        L = 'Lag' + sfx
        g('s_cmp_lg_u32 s%d, 0\ns_cbranch_scc1 %s\ns_lshl_b32 s%d, s%d, 7\ns_add_u32 s%d, s%d, %d\nv_mov_b32 v12, 1\nv_mov_b32 v14, s%d\nv_mov_b32 v15, 0\ns_mov_b64 exec, 1' % (sW, L, sT1, sG, sT0, sT1, WS_CNT, sTAG))
        g('buffer_atomic_add v12, v15, %s, s%d offen sc0\ns_add_u32 s%d, s%d, %d\ns_waitcnt vmcnt(0)\nv_cmp_eq_u32 vcc, 31, v12\ns_cbranch_vccz %sn' % (srd(SWS), sT0, sT0, sT1, WS_G2, L))
        g('buffer_store_dword v14, v15, %s, s%d offen sc1' % (srd(SWS), sT0))
        g.label(L + 'n')
        g('buffer_store_dword v14, v15, %s, s%d offen sc1\ns_mov_b64 exec, -1' % (srd(SWS), sT2))
        g.label(L)
    else: put_flag(g, sT2, 'sc1')
    g.stamp(6)
    if OPT['ct1'] == -7: g(t1.replace('a255', 'v200'))
    nis = max(NA, min(32, NC + 12))
    for x in w1dma[NA:nis]: g(x.replace('@', 's_nop 0\n'))
    g.vm = Cnt(63); g.lg = Cnt(15)
    g('s_lshr_b32 s%d, s%d, 1\ns_lshl_b32 s%d, s%d, 15\nv_add_u32 v121, s%d, v2\nv_add_u32 v122, 0x10000, v121\ns_lshl_b32 s%d, s%d, 13\nv_add_u32 v123, s%d, v2' % (sSH, sW, sT0, sSH, sT0, sT1, sW, sT1))
    g('s_lshl_b32 s%d, s%d, 2\ns_add_u32 s%d, s%d, s%d\ns_mul_i32 s%d, s%d, 57344\ns_lshl_b32 s%d, s%d, 13\ns_add_u32 s%d, s%d, s%d\ns_lshl_b32 s%d, s%d, 12\ns_add_u32 s%d, s%d, s%d'
      % (sT4, sQ4, sT4, sT4, sSH, sT3, sT4, sT0, sFL, sT3, sT3, sT0, sT0, sKap, sT3, sT3, sT0))
    g('s_lshl_b32 s%d, s%d, 20\ns_add_u32 s%d, s%d, 0x%x\ns_add_u32 s%d, s%d, s%d\ns_lshl_b32 s%d, s%d, 8\ns_add_u32 s%d, s%d, s%d\ns_add_u32 s%d, s%d, 0x%x'
      % (sDM, sG, sDM, sDM, WS_GRP, sT3, sT3, sDM, sT4, sT4, sT4, sT4, sDM, sT4, sT4, GRI))
    def poll_all(off, L, D, first):
        g('s_mov_b32 s%d, %d\ns_mov_b32 s%d, 0' % (sT0, off, sSPIN))
        if first:
            g('buffer_load_dwordx4 v[12:15], v5, %s, s%d offen sc1' % (srd(SWS), sT0))
            first()
            g('s_branch %sc' % L)
        g.label(L)
        g('buffer_load_dwordx4 v[12:15], v5, %s, s%d offen sc1' % (srd(SWS), sT0))
        g('s_add_u32 s%d, s%d, 1\ns_cmp_gt_u32 s%d, %d\ns_cbranch_scc1 %s' % (sSPIN, sSPIN, sSPIN, SPIN_MAX, D))
        g.label(L + 'c')
        g('s_waitcnt vmcnt(0)')
        g('v_xor_b32 v12, s%d, v12\nv_xor_b32 v13, s%d, v13\nv_xor_b32 v14, s%d, v14\nv_xor_b32 v15, s%d, v15' % (sTAG, sTAG, sTAG, sTAG))
        g('v_or_b32 v12, v12, v13\nv_or3_b32 v12, v12, v14, v15\nv_cmp_ne_u32 vcc, 0, v12\ns_cbranch_vccnz %s' % L)
        g.label(D)
    def htouch():
        nl = OPT['hlines']
        return ('s_mul_i32 s%d, s%d, %d\ns_mul_i32 s%d, s%d, %d\ns_add_u32 s%d, s%d, s%d\ns_add_u32 s%d, s%d, s%d\ns_add_u32 s%d, s%d, 0x%x\nv_min_u32 v8, %d, v1\nv_lshlrev_b32 v8, 7, v8\n'
                % (sT1, sR, 512 * nl, sT2, sW, 128 * nl, sT1, sT1, sT2, sT1, sT1, sDM, sT1, sT1, 0xE0000 - 16384 * nl, nl - 1)
                + 'buffer_load_dword v200, v8, %s, s%d offen %s@' % (srd(SWS), sT1, OPT['htfl'])
                + 's_add_u32 s%d, s%d, 0x%x\nv_and_b32 v8, 31, v1\nv_lshlrev_b32 v8, 7, v8\nbuffer_load_dword v200, v8, %s, s%d offen' % (sT1, sDM, GRI, srd(SWS), sT1))
    g('v_lshrrev_b32 v12, 3, v1\nv_bfe_u32 v13, v1, 4, 1\nv_lshlrev_b32 v13, 2, v13\nv_and_b32 v14, 7, v1\nv_xor_b32 v13, v13, v14\nv_lshlrev_b32 v12, 10, v12\nv_lshl_add_u32 v12, v13, 4, v12')
    g('s_mul_i32 s%d, s%d, %d\ns_mul_i32 s%d, s%d, %d\ns_add_u32 s%d, s%d, s%d\ns_and_b32 s%d, s%d, 7\ns_lshl_b32 s%d, s%d, 7\ns_add_u32 s%d, s%d, s%d\nv_add_u32 v127, s%d, v12\ns_mul_i32 s%d, s%d, 7168'
      % (sT0, sPH, 896 * 1024, sT1, sW, 56 * 1024, sT0, sT0, sT1, sT1, sR, sT1, sT1, sT0, sT0, sT1, sT0, sDV, sW))
    PB = [LX, 0, 32768, 65536]
    def w2pair(P):
        L = dma4(g, 127, SW2, 7, 32768)
        if P == 3: L[0] = 's_lshr_b32 s%d, s%d, 1\ns_mul_i32 s%d, s%d, %d\ns_add_u32 m0, m0, s%d\ns_nop 0\n' % (sMK, sW, sMK, sMK, 32768 - 14336, sMK) + L[0]
        L[0] = 's_add_u32 m0, s%d, %d\n%s\n' % (sDV, PB[P], 'v_add_u32 v127, %d, v127' % (229376 - 32768) if P else 's_nop 0') + L[0]
        return L
    LM = LX + 28672
    tpos = 99
    for o in range(3):
        if 8 * (o + 1) > NC: g('s_waitcnt vmcnt(%d)\ns_barrier' % max(0, nis - 8 * (o + 1) - (1 if 8 * (o + 1) > tpos else 0)))
        g(g.z('x%d' % o))
        for j in range(max(J0, 8 * o), 8 * o + 8):
            x = w1dma[nis].replace('@', '').split('\n') if nis < len(w1dma) else []
            if x: g(x[0]); nis += 1
            w1step(j)
            g('\n'.join(x[1:]))
            g('s_waitcnt lgkmcnt(8)')
            if j >= 2:
                for x in csum(j - 2): g(x)
    assert nis == len(w1dma)
    if OPT['ct2'] == -2: g(t2l)
    g('s_mov_b32 s%d, %d\ns_mov_b32 s%d, %d\ns_mov_b32 s%d, %d' % (sO1, 7168, sO2, 2 * 7168, sO3, 3 * 7168))
    g(g.z('xr'))
    g.stamp(7)
    g('s_cmp_lg_u32 s%d, 0\ns_cbranch_scc1 Lf2d%s' % (sW, sfx))
    if OPT['agg']:
        L = 'Lg' + sfx
        g('v_and_b32 v13, 7, v1\nv_lshlrev_b32 v13, 7, v13\ns_mov_b32 s%d, %d\ns_mov_b32 s%d, 0' % (sT0, WS_G2, sSPIN))
        g.label(L)
        g('buffer_load_dword v12, v13, %s, s%d offen sc1\ns_add_u32 s%d, s%d, 1\ns_waitcnt vmcnt(0)\nv_cmp_ne_u32 vcc, s%d, v12\ns_cbranch_vccz Lf2d%s' % (srd(SWS), sT0, sSPIN, sSPIN, sTAG, sfx))
        if OPT['slp']: g('s_sleep %d' % OPT['slp'])
        g('s_cmp_lt_u32 s%d, %d\ns_cbranch_scc1 %s' % (sSPIN, 64 if loc else 1, L))
    poll_all(WS_F2, 'Lf2' + sfx, 'Lf2d' + sfx, None)
    g('s_waitcnt vmcnt(0) lgkmcnt(0)\ns_barrier')
    g.stamp(8)
    g('s_cmp_ge_u32 s%d, 28\ns_cbranch_scc1 Lsw%s' % (sR, sfx))
    g.vm = Cnt(63); g.lg = Cnt(15)
    g('s_lshl_b32 s%d, s%d, 15\ns_lshl_b32 s%d, s%d, 13\ns_add_u32 s%d, s%d, s%d\ns_lshl_b32 s%d, s%d, 17\ns_add_u32 s%d, s%d, s%d\ns_mov_b32 m0, s%d\ns_add_u32 s%d, s%d, 0x%x'
      % (sT1, sSH, sT0, sKap, sT1, sT1, sT0, sT0, sT, sT0, sT0, sT1, sT1, sT0, sT0, WS_HT))
    def hdma(steps):
        L = []
        for n, st in enumerate(steps):
            for i in range(4):
                x = 'buffer_load_dwordx4 v5, %s, s%d offen offset:%d sc1 lds' % (srd(SWS), sT0, 1024 * i)
                if i == 0 and n: x = 's_add_u32 m0, m0, %d\ns_add_u32 s%d, s%d, %d\n' % (st, sT0, sT0, st) + x
                L.append((x, 'h%d' % (n // 2)))
        return L
    hd = hdma([0, 4096, 12288, 4096, 65536 - 20480, 4096, 12288, 4096])
    NH0 = OPT['nh0']
    assert NH0 <= 16
    NB = OPT['nhb']
    for x, t in hd[:NB]: g.vmem(x, t)
    g(g.z('x3'))
    for j in range(24, 32):
        w1step(j)
        if NB + j - 24 < NH0: g.vmem(*hd[NB + j - 24])
        g('s_waitcnt lgkmcnt(8)')
        for x in csum(j - 2): g(x)
    g('s_waitcnt lgkmcnt(0)')
    for x in csum(30) + csum(31): g(x)
    g('v_lshrrev_b32 v6, 5, v1\nv_lshlrev_b32 v6, 6, v6\ns_lshl_b32 s%d, s%d, 7\ns_add_u32 s%d, s%d, %d\nv_add_u32 v6, s%d, v6\nv_xor_b32 v7, 256, v6' % (sT1, sW, sT1, sT1, LM, sT1))
    g('s_nop 3\ns_mov_b32 exec_lo, 1\ns_mov_b32 exec_hi, 1')
    for i in range(4): g('ds_write_b128 v6, %s offset:%d' % (v(80 + 4 * i, 4), 16 * i))
    g('s_mov_b64 exec, -1')
    g('v_and_b32 v8, 31, v1\nv_lshlrev_b32 v4, 3, v8\ns_lshl_b32 s%d, s%d, 11\nv_add_u32 v182, s%d, v5\nv_xor_b32 v183, 2048, v182' % (sT1, sSH, sT1))
    g.wvm('h0')
    g('s_waitcnt lgkmcnt(0)\ns_barrier')
    for i in range(4): g('ds_read_b128 %s, v7 offset:%d' % (v(96 + 4 * i, 4), 16 * i))
    g.stamp(9)
    late = [(0, 0, x, t) for x, t in hd[NH0:]]
    ht = [OPT['hj'] + (htouch().split('@')[0].replace('v8', 'v202').replace('s%d' % sT1, 's%d' % sMK).replace('s%d' % sT2, 's%d' % (sMK + 1)), None)] if loc and OPT['htouch'] else []
    late = late[:OPT['hpos']] + ht + late[OPT['hpos']:]
    if OPT['ct2'] == -8: late.insert(OPT['t2pos'], (0, 0, t2l, None))
    if OPT['ct2'] == -1: late.append((0, 0, t2l, None))
    if OPT['ct2'] == -4: late.append((1, OPT['mj'][1] + 1, t2l, None))
    pb, pj = OPT['pw']
    late += [(pb, pj, x, None) for x in w2pair(0)] + [(1, 11, x, None) for x in w2pair(1) + w2pair(2)] + [(1, OPT['fa'] + 1, x, None) for x in w2pair(3)]
    AH = 5
    RG = lambda j: 128 + 4 * (j % 8)
    def rdh(B, j): return ['ds_read_b64_tr_b16 %s, v%d offset:%d' % (v(RG(j) + 2 * t, 2), 121 + B, 1024 * j + 512 * t) for t in range(2)]
    def epilogue(B):
        f = []
        for i in range(2):
            A = 16 + 32 * B + 16 * i; P = 112 if i == 0 else 160
            for k in range(16): f.append('v_fmac_f32 v%d, v120, v%d' % (A + k, 80 + 16 * i + k))
            for k in range(8): f.append('v_cvt_pk_bf16_f32 v%d, v%d, v%d' % (P + k, A + 2 * k, A + 2 * k + 1))
            for k in range(8): f.append('v_pk_max_i16 v%d, v%d, 0' % (P + k, P + k))
            for k in range(2): f.append('buffer_store_dwordx4 %s, v%d, %s, s%d offen offset:%d %s' % (v(P + 4 * k, 4), 182 + i, srd(SWS), sT3, 1024 * k, fl + ' ' + OPT['hst']))
        return f
    def mload(B): return 'buffer_load_dwordx2 v[124:125], v4, %s, s%d offen offset:%d sc1' % (srd(SWS), sT4, 512 * B)
    def mcheck(B):
        L = 'Lm%d%s' % (B, sfx)
        return ('v_cmp_ne_u32 vcc, s%d, v125\ns_cbranch_vccz %sk\ns_mov_b32 s%d, 0\n%s:\n%s\ns_add_u32 s%d, s%d, 1\ns_cmp_gt_u32 s%d, %d\ns_cbranch_scc1 %sk\ns_waitcnt vmcnt(0)\n'
                % (sTAG, L, sSPIN, L, mload(B), sSPIN, sSPIN, sSPIN, SPIN_MAX, L)
                + 'v_cmp_ne_u32 vcc, s%d, v125\ns_cbranch_vccnz %s\n%sk:\nv_lshlrev_b32 v120, 16, v124\nv_xor_b32 v120, 0x80000000, v120' % (sTAG, L, L))
    lq = ['cs'] * 4
    def lds(x, tag): lq.append(tag); return x
    def lwait(tag):
        idx = [i for i, t in enumerate(lq) if t == tag]
        if not idx: return ''
        n = len(lq) - 1 - idx[-1]; del lq[:idx[-1] + 1]
        return 's_waitcnt lgkmcnt(%d)' % n
    for j in range(AH):
        for x in rdh(0, j): g(lds(x, (0, j)))
    m0j, e0, e1 = OPT['mj'], OPT['e0'], OPT['e1']
    for B in range(2):
        ep = epilogue(0) if B else []
        slots = {k: [] for k in range(64)}
        for k, x in enumerate(ep): slots[2 * e0 + k * 2 * (e1 - e0) // len(ep)].append(x)
        for j in range(32):
            g(g.z('g%d_%d' % (B, j)))
            nb, nj = (B, j + AH) if j + AH < 32 else (B + 1, j + AH - 32)
            rr = rdh(nb, nj) if nb < 2 else []
            need = {(0, 10): 'h1', (0, 26): 'h2', (1, 10): 'h3'}.get((B, j))
            if need: g('s_waitcnt vmcnt(%d)\ns_barrier' % g.vm.need(need))
            if (B, j) == (1, e0 - 1):
                g.wvm('m'); g(mcheck(0))
            g(lwait((B, j)))
            for i in range(2):
                A = v(16 + 32 * B + 16 * i, 16)
                g('v_mfma_f32_32x32x16_bf16 %s, %s, %s, %s' % (A, a(8 * j + 4 * i, 4), v(RG(j), 4), '0' if j == 0 else A))
                if rr: g(lds(rr[i], (nb, nj)))
                for x in slots[2 * j + i]:
                    if x.startswith('buffer'): g.vmem(x, 'st0')
                    else: g(x)
                if late and (i == 1 or (OPT['dense'] and B == 0) or (B, j) > (1, OPT['fa'])) and late[0][:2] <= (B, j):
                    _, _, x, t = late.pop(0); g.vmem(x, t)
            if (B, j) == m0j: g.vmem(mload(0), 'm')
            if (B, j) == (1, OPT['fa']):
                g('s_waitcnt vmcnt(%d)\ns_barrier\ns_add_u32 s%d, s%d, %d' % (g.vm.need('st0'), sT2, sF3, WS_F3A + (0 if loc else 0x400)))
                put_flag(g, sT2, fl)
            if (B, j) == (1, OPT['mj1']): g.vmem(mload(1).replace('v[124:125]', 'v[168:169]'), 'm1')
    g(g.z('t0'))
    def hload(i):
        pre = 's_add_u32 s%d, s%d, 4096\n' % (sHB, sHB) if i and i % 4 == 0 else ''
        return pre + 'buffer_load_dwordx4 %s, v5, %s, s%d offen offset:%d sc1 %s' % (a(4 * i, 4), srd(SWS), sHB, 1024 * (i % 4), OPT['Hfl'])
    NH = OPT['nH']
    f3load = 'buffer_load_dword v9, v178, %s, s%d offen sc1' % (srd(SWS), sFA)
    f3test = 'v_cmp_eq_u32 vcc, s%d, v9\ns_nop 0\ns_or_b32 s%d, vcc_lo, vcc_hi\ns_and_b32 s%d, s%d, s%d\ns_cmp_lg_u32 s%d, s%d' % (sTAG, sT1, sT1, sT1, sNEED, sT1, sNEED)
    g.wvm('m1'); g('v_mov_b32 v124, v168\nv_mov_b32 v125, v169\ns_add_u32 s%d, s%d, %d' % (sT3, sT3, 2 * 57344)); g(mcheck(1))
    g(g.z('t1'))
    g(f3load + '\ns_nop 1')
    for x in epilogue(1): g(x)
    g(g.z('t2'))
    for x in late: g(x[2])
    g('s_add_u32 s%d, s%d, %d\nv_mov_b32 v14, s%d\nv_mov_b32 v15, 0\ns_waitcnt vmcnt(0)\ns_barrier' % (sT2, sF3, WS_F3L if loc else WS_F3G, sTAG))
    g('s_cmp_lg_u32 s%d, 3\ns_cbranch_scc1 Lnf%s\ns_mov_b64 exec, 1\nbuffer_store_dword v14, v15, %s, s%d offen %s\ns_mov_b64 exec, -1\nLnf%s:' % (sW, sfx, srd(SWS), sT2, fl, sfx))
    g(f3test + '\ns_cbranch_scc0 Lp3%sd' % sfx)
    g(g.z('t3'))
    g('s_branch Lg2%s' % sfx)
    g.label('Lsw' + sfx)
    g('s_lshl_b32 s%d, s%d, 17\ns_lshl_b32 s%d, s%d, 13\ns_add_u32 s%d, s%d, s%d\ns_add_u32 s%d, s%d, 0x%x\ns_mov_b32 m0, s%d\ns_nop 0' % (sT0, sT, sT1, sW, sT0, sT0, sT1, sT0, sT0, WS_HT, sT1))
    hs = [x for x, t in hdma([0, 4096] + [28672, 4096] * 3)]
    for x in hs[:12]: g(x)
    g('s_lshl_b32 s%d, s%d, 10\ns_add_u32 s%d, s%d, s%d\ns_lshl_b32 s%d, s%d, 8\ns_add_u32 s%d, s%d, s%d\ns_add_u32 s%d, s%d, 0x%x\nv_and_b32 v8, 31, v1\nv_lshlrev_b32 v3, 3, v8'
      % (sT4, sQ4, sT4, sT4, sDM, sT1, sKap, sT4, sT4, sT1, sT4, sT4, GRI))
    g('v_lshlrev_b32 v7, 5, v8\nv_add_u32 v7, %d, v7\ns_lshl_b32 s%d, s%d, 3\nv_add_u32 v6, s%d, v7\nv_mov_b32 v4, 0x3f803f80\ns_lshl_b32 s%d, s%d, 10\nv_add_u32 v7, s%d, v7\nv_mov_b32 v117, s%d'
      % (LM, sT1, sW, sT1, sT1, sKap, sT1, sTAG))
    ns = 12; nst = 0
    for b in range(4):
        g('s_waitcnt vmcnt(%d)' % (ns - 8 * (b + 1) + (nst if b == 3 else 0)))
        if b == 2: g('v_add_u32 v123, 0x10000, v123')
        for j in range(8):
            for t in range(2): g('ds_read_b64_tr_b16 %s, v123 offset:%d' % (v(48 + 4 * j + 2 * t, 2), 32768 * (b & 1) + 1024 * j + 512 * t))
            if j == 5: g('s_waitcnt lgkmcnt(6)')
        g('v_mov_b32 v106, 0\nv_mov_b32 v107, 0')
        for i in range(32):
            if i % 8 == 0: g('s_waitcnt lgkmcnt(%d)' % max(0, 8 - i // 2 * 1 if False else (12 - 4 * (i // 8 + 1) if i < 24 else 0)))
            g('v_dot2c_f32_bf16 v106, v%d, v4\nv_dot2c_f32_bf16 v107, v%d, v%d' % (48 + i, 48 + i, 48 + i))
            if i % 3 == 2 and ns < min(32, 8 * (b + 2) + 6): g(hs[ns]); ns += 1
        g('s_nop 2\nv_mov_b32 v108, v106\nv_mov_b32 v109, v107\ns_nop 1\nv_permlane32_swap_b32 v106, v108\nv_permlane32_swap_b32 v107, v109\ns_nop 1')
        g('v_add_f32 v106, v106, v108\nv_add_f32 v107, v107, v109\nds_write_b64 v6, v[106:107] offset:%d' % (1024 * b))
        if b & 1:
            g('s_waitcnt lgkmcnt(0)\ns_barrier\nds_read_b128 v[108:111], v7 offset:%d\nds_read_b128 v[112:115], v7 offset:%d\ns_waitcnt lgkmcnt(0)' % (1024 * (b - 1), 1024 * (b - 1) + 16))
            for x in ['v_pk_add_f32 v[108:109], v[108:109], v[110:111]', 'v_pk_add_f32 v[112:113], v[112:113], v[114:115]',
                      'v_pk_add_f32 v[108:109], v[108:109], v[112:113]',
                      'v_mul_f32 v108, 0x3b000000, v108', 'v_mul_f32 v109, 0x3b000000, v109',
                      'v_fma_f32 v109, -v108, v108, v109', 'v_max_f32 v109, 0, v109',
                      'v_cvt_pk_bf16_f32 v109, v109, v109', 'v_lshlrev_b32 v109, 16, v109',
                      'v_add_f32 v109, 0x3727c5ac, v109', 'v_cvt_pk_bf16_f32 v109, v109, v109', 'v_lshlrev_b32 v109, 16, v109',
                      'v_sqrt_f32 v109, v109', 's_nop 0', 'v_cvt_pk_bf16_f32 v116, v108, v109',
                      'buffer_store_dwordx2 v[116:117], v3, %s, s%d offen offset:%d %s' % (srd(SWS), sT4, 256 * (b - 1), fl)]: g(x)
            nst = 0
            g(g.z('u%d' % b))
    assert ns == 32
    if loc and OPT['htouch']: g(htouch().split('@')[0])
    if OPT['ct2'] in (-1, -4, -8): g(t2l)
    g('s_barrier')
    for P in range(4):
        for x in w2pair(P): g(x)
    g('s_waitcnt vmcnt(0)\ns_barrier')
    g.label('Lg2' + sfx)
    g.stamp(10)
    g.vm = Cnt(63); g.lg = Cnt(15)
    L = 'Lp3' + sfx; D = L + 'd'
    g('s_mov_b32 s%d, 0' % sSPIN)
    g.label(L)
    g('s_add_u32 s%d, s%d, 1' % (sSPIN, sSPIN))
    g(f3load)
    g('s_cmp_gt_u32 s%d, %d\ns_cbranch_scc1 %s\ns_waitcnt vmcnt(0)' % (sSPIN, SPIN_MAX, D))
    g(f3test + '\ns_cbranch_scc1 ' + L)
    g.label(D)
    for i in range(NH): g.vmem(hload(i), 'H%d' % i)
    g.stamp(11)
    side = ['s_mov_b32 m0, s%d\ns_nop 0\nbuffer_load_dwordx4 v5, %s, s%d offen sc1 lds' % (sT5, srd(SWS), sRS), 'buffer_load_dwordx4 v5, %s, s%d offen offset:1024 sc1 lds' % (srd(SWS), sRS),
                        'buffer_load_dwordx2 v[96:97], v171, %s, s%d offen sc1' % (srd(SWS), sRI)]
    def rdw(n):
        hlf, ks = divmod(n, 56)
        P, k = divmod(ks, 14)
        base = [172, 173, 173, 174][P]; off = k * 2048 + (32768 if P == 2 else 0) + (32768 - 14336 if P == 3 and k >= 7 else 0)
        return ['ds_read_b64_tr_b16 %s, v%d offset:%d' % (v(128 + 4 * (n % 8) + 2 * t, 2), base + 3 * hlf, off + 1024 * t) for t in range(2)]
    AW = 5
    for n in range(AW):
        for x in rdw(n): g(x)
    un = [('v_lshlrev_b32 v%d, 16, v%d' if j % 2 == 0 else 'v_and_b32 v%d, 0xffff0000, v%d') % (80 + j, 98 + j // 2) for j in range(16)]
    ex = ['s_xor_b32 s%d, s2, 1' % sT0, 's_and_b32 s%d, s%d, 7\ns_lshl_b32 s%d, s%d, 5' % (sT1, sT0, sT1, sT1), 's_add_u32 s%d, s%d, s%d\ns_lshl_b32 s%d, s%d, 2' % (sT1, sT1, sR, sT1, sT1),
          's_add_u32 s%d, s%d, s%d\ns_lshl_b32 s%d, s%d, 12' % (sT1, sT1, sW, sO1, sT1), 's_add_u32 s%d, s%d, 0x%x\ns_xor_b32 s%d, s%d, 0x80000' % (sO1, sO1, WS_XB, sO2, sO1),
          's_lshl_b32 s%d, s%d, 15\ns_lshl_b32 s%d, s%d, 7' % (sT0, sSB, sT1, sDT), 's_add_u32 s%d, s%d, s%d\ns_lshl_b32 s%d, s%d, 6' % (sT0, sT0, sT1, sT1, sPH),
          's_add_u32 s%d, s%d, s%d\ns_add_u32 s%d, s%d, 0x4000' % (sT0, sT0, sT1, sT1, sT0), ('v_cmp_ne_u32 vcc, s%d, v97\ns_cbranch_vccz Lr%sk\ns_mov_b32 s%d, 0\nLr%s:\nbuffer_load_dwordx2 v[96:97], v171, %s, s%d offen sc1\ns_add_u32 s%d, s%d, 1\ns_cmp_gt_u32 s%d, %d\ns_cbranch_scc1 Lr%sk\n'
           % (sTAG, sfx, sSPIN, sfx, srd(SWS), sRI, sSPIN, sSPIN, sSPIN, SPIN_MAX, sfx)
           + 's_waitcnt vmcnt(0)\nv_cmp_ne_u32 vcc, s%d, v97\ns_cbranch_vccnz Lr%s\nLr%sk:\nv_and_b32 v96, 0xffff0000, v96' % (sTAG, sfx, sfx)), 'v_rcp_f32 v96, v96', 'v_mov_b32 v11, s%d\nv_mov_b32 v12, 0xff' % sTAG, 'v_and_b32 v8, 0xff, v11\nv_bfe_u32 v9, v11, 8, 8', 'v_bfe_u32 v10, v11, 16, 8\nv_lshrrev_b32 v11, 24, v11']
    fl2 = ex
    send = []
    for i in range(4):
        send += ['v_bfi_b32 v%d, v12, v%d, v%d' % (16 + 4 * i + k, 8 + k, 16 + 4 * i + k) for k in range(4)]
        send.append('buffer_store_dwordx4 %s, v5, %s, s%d offen offset:%d sc1 %s' % (v(16 + 4 * i, 4), srd(SWS), sO1, 1024 * i, OPT['xbst']))
    for n in range(112):
        hlf, ks = divmod(n, 56)
        A = v(16 + 16 * hlf, 16)
        if n == 56: g.stamp(12)
        g(g.z('n%d' % n))
        if not hlf: g.wvm('H%d' % ks)
        g('s_waitcnt lgkmcnt(%d)' % (2 * min(AW - 1, 111 - n)))
        g('v_mfma_f32_32x32x16_bf16 %s, %s, %s, %s' % (A, v(128 + 4 * (n % 8), 4), a(4 * ks, 4), '0' if ks == 0 else A))
        if n + AW < 112:
            for x in rdw(n + AW): g(x)
        if n + NH < 56: g.vmem(hload(n + NH), 'H%d' % (n + NH))
        if n < len(side): g.vmem(side[n], 'side')
        if n == OPT['cln'] and loc:
            g('s_mul_i32 s%d, s%d, 7168\ns_add_u32 s%d, s%d, s%d\ns_sub_u32 s%d, s%d, %d\ns_add_u32 s%d, s%d, 4096' % (sT2, sDT, sT2, sT2, sHB, sT2, sT2, 13 * 4096, sT3, sT2))
            for d in range(8):
                if d < 7: g('s_cmp_lg_u32 s%d, %d\ns_cbranch_scc1 Lcl%d' % (sDT, d, d))
                for i in range(7): g('buffer_store_dwordx4 %s, v5, %s, s%d offen offset:%d sc1' % (a(4 * (7 * d + i), 4), srd(SWS), sT2 if i < 4 else sT3, 1024 * (i & 3)))
                if d < 7: g('s_branch Lcle\nLcl%d:' % d)
            g.label('Lcle')
        if n == OPT['wbn'] and loc:
            g('s_cmp_lg_u32 s%d, %d\ns_cbranch_scc1 Lwb\ns_cmp_lg_u32 s%d, 3\ns_cbranch_scc1 Lwb\nbuffer_wbl2 sc1\nLwb:' % (sR, OPT['wbr'], sW))
        if 30 <= n < 30 + len(fl2): g(fl2[n - 30])
        if n == 64:
            for i in range(4): g('ds_read_b64_tr_b16 %s, v170 offset:%d' % (v(98 + 2 * i, 2), 512 * i))
        if 72 <= n < 88: g(un[n - 72])
        if 59 <= n < 63:
            for x in send[5 * (n - 59): 5 * (n - 58)]: g(x)
        if OPT['xn'] <= n < OPT['xn'] + 4: g('buffer_load_dwordx4 %s, v5, %s, s%d offen offset:%d sc1' % (v(48 + 4 * (n - OPT['xn']), 4), srd(SWS), sO2, 1024 * (n - OPT['xn'])))
    g(g.z('y0'))
    L = 'Lx' + sfx; D = 'Lxd' + sfx
    g('s_mov_b32 s%d, 0\ns_branch %sc' % (sSPIN, L))
    g.label(L)
    for i in range(4): g('buffer_load_dwordx4 %s, v5, %s, s%d offen offset:%d sc1' % (v(48 + 4 * i, 4), srd(SWS), sO2, 1024 * i))
    g('s_add_u32 s%d, s%d, 1\ns_cmp_gt_u32 s%d, %d\ns_cbranch_scc1 %s' % (sSPIN, sSPIN, sSPIN, SPIN_MAX, D))
    g.label(L + 'c')
    for i in range(4):
        g('s_waitcnt vmcnt(%d)' % (3 - i))
        r = 48 + 4 * i
        for k in range(4): g('v_xor_b32 v%d, v%d, v%d' % (r + k, 8 + k, r + k))
        g('v_or3_b32 v13, v%d, v%d, %s\nv_or3_b32 v13, v%d, v%d, v13' % (r, r + 1, 'v13' if i else '0', r + 2, r + 3))
    g('v_and_b32 v13, 0xff, v13\nv_cmp_ne_u32 vcc, 0, v13\ns_cbranch_vccnz %s' % L)
    g.label(D)
    g('s_waitcnt vmcnt(0)\ns_nop 4')
    g(g.z('y1'))
    for blk in range(4):
        b = 4 * blk
        g('v_pk_add_f32 %s, %s, %s\nv_pk_add_f32 %s, %s, %s' % (v(48 + b, 2), v(48 + b, 2), v(32 + b, 2), v(50 + b, 2), v(50 + b, 2), v(34 + b, 2)))
        for j in range(4): g('v_fmac_f32 v%d, v96, v%d' % (80 + b + j, 48 + b + j))
        g('v_cvt_pk_bf16_f32 v%d, v%d, v%d\nv_cvt_pk_bf16_f32 v%d, v%d, v%d' % (64 + 2 * blk, 80 + b, 81 + b, 65 + 2 * blk, 82 + b, 83 + b))
        g('ds_write_b64 v179, %s offset:%d' % (v(64 + 2 * blk, 2), 16 * blk))
    g('s_waitcnt lgkmcnt(0)\nds_read_b128 v[72:75], v180\nds_read_b128 v[76:79], v180 offset:%d' % (16 * 80))
    g('s_waitcnt lgkmcnt(1)\nbuffer_store_dwordx4 v[72:75], v181, %s, s%d offen %s\ns_waitcnt lgkmcnt(0)\nbuffer_store_dwordx4 v[76:79], v181, %s, s%d offen %s' % (srd(SOUT), sT0, OPT['ost'], srd(SOUT), sT1, OPT['ost']))
    g(g.z('y2'))
    g('s_branch L_fin')

def finish(g):
    g.label('L_fin')
    g('s_cmp_lg_u32 s2, 0\ns_cbranch_scc1 L_noep\ns_mov_b32 s%d, %d' % (sT2, WS_EPOCH))
    put_flag(g, sT2, 'sc1')
    g.label('L_noep')
    if g.diag:
        g('s_waitcnt vmcnt(0)')
        g.stamp(13)
        if str(g.diag).startswith('amp'):
            i = int(g.diag[3:])
            if i >= 90:
                if i == 91: g('buffer_wbl2 sc1\ns_waitcnt vmcnt(0)')
                g('s_add_u32 s%d, s%d, 4000\ns_branch L_amp' % (sT0, SSTAMP)); i = 13
            g('s_sub_u32 s%d, s%d, s%d\ns_lshl_b32 s%d, s%d, 3\ns_add_u32 s%d, s%d, s%d' % (sT0, SSTAMP + i, SSTAMP, sT0, sT0, sT0, sT0, SSTAMP + 13))
            g.label('L_amp')
            g('s_memrealtime s[100:101]\ns_waitcnt lgkmcnt(0)\ns_sub_u32 s%d, s100, s%d\ns_cmp_lt_i32 s%d, 0\ns_cbranch_scc1 L_amp\ns_branch L_exit' % (sT1, sT0, sT1))
        if not g.zoom: g('s_mov_b32 s%d, s%d' % (SSTAMP + 15, sXCC))
        g('s_waitcnt lgkmcnt(0)')
        if g.zoom: g('s_mov_b32 s%d, s100' % (SSTAMP + 1))
        g('s_cmp_lg_u32 s%d, %d\ns_cbranch_scc1 L_exit' % (sW, OPT['zw']))
        for i in range(16): g('v_mov_b32 v%d, s%d' % (16 + i, SSTAMP + i))
        g('s_lshl_b32 s%d, s2, 6\ns_add_u32 s%d, s%d, 0x%x\nv_mov_b32 v8, 0\ns_mov_b64 exec, 1' % (sT0, sT0, sT0, WS_STAMP))
        for i in range(4): g('buffer_store_dwordx4 %s, v8, %s, s%d offen offset:%d' % (v(16 + 4 * i, 4), srd(SWS), sT0, 16 * i))
    g.label('L_exit')
    g('s_endpgm')

def build(diag=False, force=None, zoom=None):
    g = G(diag, zoom)
    prologue(g)
    g.wvm('qrow')
    g(g.z('p_q'))
    g('v_readfirstlane_b32 s%d, v74\ns_nop 3\ns_add_u32 s%d, s%d, 0x%x' % (sTAG, sTAG, sTAG, TAGC))
    ln1(g)
    p0_compute(g)
    g.stamp(1)
    if g.diag and not g.zoom: g('s_mov_b32 s%d, 0' % (SSTAMP + 14))
    import copy
    vm0 = copy.deepcopy(g.vm)
    if force == 'glob': g('s_waitcnt vmcnt(0)\ns_branch L_glob')
    else: census(g)
    g.label('L_loc')
    if g.diag and not g.zoom: g('s_mov_b32 s%d, 1' % (SSTAMP + 14))
    body(g, True)
    finish(g)
    g.label('L_mainend')
    g.vm = vm0
    g.label('L_glob')
    body(g, False)
    hdr = open('cdna_kernels/%s.s.ref' % NAME).read().split('; Override launch')[0]
    s = hdr + '; @launch grid=(256,1,1) block=(256,1,1) lds=%d\n' % LDS_BYTES
    s += '.amdgcn_target "amdgcn-amd-amdhsa--gfx950"\n.text\n.globl %s_kernel\n.p2align 8\n.type %s_kernel,@function\n%s_kernel:\n' % (NAME, NAME, NAME)
    s += '\n'.join(g.l) + '\n'
    s += '.section .rodata,"a"\n.p2align 6\n.amdhsa_kernel %s_kernel\n' % NAME
    s += ('  .amdhsa_next_free_vgpr 512\n  .amdhsa_next_free_sgpr 102\n  .amdhsa_accum_offset 256\n  .amdhsa_group_segment_fixed_size 0\n'
          '  .amdhsa_kernarg_size 96\n  .amdhsa_user_sgpr_count 2\n  .amdhsa_user_sgpr_kernarg_segment_ptr 1\n  .amdhsa_system_sgpr_workgroup_id_x 1\n.end_amdhsa_kernel\n')
    return s

ZOOMS = dict(
    e2e=['s9', 'g1_31', 't2', 's11', 's12', 'y0', 'y1', 's13'],
    a1=['s0', 'p_is', 'p_i2', 'p_q', 'l3', 'p_kv', 'p_u', 'p_st'],
    a2=['p_st', 'd0', 'p_fl', 'p_ab', 's3', 's4', 'c8', 'c32'],
    a3=['c32', 'c48', 'c57', 'c100', 'c143', 's5', 'e2', 'e3'],
    a4=['e3', 'e4', 's6', 'x0', 'x1', 's7', 's8', 's9'],
    a5=['y0', 'y1', 'y2', 's13'],
    sw=['s8', 'u0', 'u1', 'u2', 'u3', 's11'],
    g2=['s10', 's11', 's12', 'y0', 'y1', 's13'],
    g1t=['g1_26', 'g1_31', 't0', 't1', 't2', 's11', 's12', 'y0'],
    p2=['s11', 'n10', 'n20', 'n30', 'n31', 'n44', 'n56', 'y0'],
    w3b=['s6', 'x0', 'x1', 'x2', 's7', 's8', 'x3', 's9'],
    ep=['c143', 's5', 'e1', 'e2', 'e3', 'e4', 's6', 'x16'],
    ln=['s0', 'p_is', 'p_i2', 'p_q', 'l3', 'l4', 'p_qq', 'p_kv'],
    ln0=['p_is', 'p_q', 'l1', 'l2', 'l3', 'l4', 'p_qq', 'p_kv'],
    p1=['s0', 'p_q', 'p_kv', 'p_st', 'd0', 'p_fl', 'p_ab', 's3'],
    cv2=['s3', 's4', 'c56', 'c57', 'c143', 's5', 'e3', 's6'],
    p0=['s0', 'p_is', 'p_q', 'p_qq', 'p_kv', 'p_st', 'p_fl', 'p_ab'],
    conv=['s0', 'p_fl', 's3', 's4', 'c143', 's5', 's6', 's7'],
    w3=['s6', 's7', 's8', 's9', 's10', 's11', 's12', 's13'],
    g1a=['s9', 'g0_4', 'g0_10', 'g0_11', 'g0_18', 'g0_26', 'g0_27', 'g1_0'],
    g1b=['g1_0', 'g1_1', 'g1_2', 'g1_10', 'g1_11', 'g1_20', 'g1_25', 'g1_26'],
)
if __name__ == '__main__':
    for n, zz in ZOOMS.items(): open('zoom_%s.s' % n, 'w').write(build(diag='cyc', zoom=zz))
    open('cdna_kernels/%s.s' % NAME, 'w').write(build())
    open('diag.s', 'w').write(build(diag=True))
    open('diagcyc.s', 'w').write(build(diag='cyc'))
    open('glob.s', 'w').write(build(diag=True, force='glob'))
```

```python
import sys
NAME = 'sequential_preLN__ssm_conv_h3__dense_activation_relu__prompt'

WS_EPOCH = 0x0
WS_F1L, WS_F1G = 0x400, 0x800
WS_F2 = 0x1000
WS_F3L, WS_F3G = 0x1800, 0x1C00
WS_F3A = 0x2C00
WS_CNT, WS_G2 = 0x2400, 0x2800
WS_STAMP = 0x4000
WS_FQ = 0x2000
WS_ST = 0x10000
WS_F4 = 0x8000
WS_HT = 0x100000
WS_XB = 0x400000
WS_GRP = 0x800000
GQQ, GUR, GRI = 0, 0x40000, 0xE0000
WS_BYTES = 0x1000000
TAGC = 0x9E3779B9
LX = 131072
LDS_BYTES = 163840
LIMG, IMGP = LX + 9216, 1088
LSSM, SSMQ, LQS = 65536, 4608, 102400
def ssm_blk(b): return b * SSMQ + 64
SSMA = (0, 40, 136, 168)

class Cnt:
    def __init__(self, mx): self.n = 0; self.tags = {}; self.mx = mx
    def issue(self, tag=None):
        self.n += 1
        if tag is not None: self.tags[tag] = self.n
    def need(self, tag): return min(self.mx, self.n - self.tags[tag])

class G:
    def __init__(self, diag=False, zoom=None):
        self.zoom = zoom
        self.l = []; self.uid = 0; self.diag = diag; self.clk = 's_memtime' if diag == 'cyc' else 's_memrealtime'
        self.vm = Cnt(63); self.lg = Cnt(15)
    def __call__(self, s):
        for x in s.strip('\n').split('\n'):
            x = x.strip()
            if x: self.l.append('    ' + x)
    def label(self, n): self.l.append(n + ':')
    def new(self, p='L'):
        self.uid += 1; return '%s%d' % (p, self.uid)
    def vmem(self, s, tag=None): self(s); self.vm.issue(tag)
    def lds(self, s, tag=None): self(s); self.lg.issue(tag)
    def wvm(self, tag): self('s_waitcnt vmcnt(%d)' % self.vm.need(tag))
    def wlg(self, tag): self('s_waitcnt lgkmcnt(%d)' % self.lg.need(tag))
    def z(self, name):
        if self.zoom and name in self.zoom:
            i = self.zoom.index(name)
            return 's_memtime s[%d:%d]' % (SSTAMP + 2 * i, SSTAMP + 2 * i + 1)
        return ''
    def zw(self, name):
        x = self.z(name)
        if x: self('s_waitcnt vmcnt(0)\n' + x)
    def stamp(self, i):
        if self.zoom: self(self.z('s%d' % i))
        elif self.diag and (self.diag is True or self.diag == 'cyc' or i == 13 or self.diag == 'amp%d' % i):
            self('%s s[%d:%d]\ns_waitcnt lgkmcnt(0)\ns_mov_b32 s%d, s%d' % (self.clk, 100, 101, SSTAMP + i, 100))

SQ, SK, SV, SSH, SSSM, SW1, SW2, SOUT, SWS, SDBG = 4, 8, 12, 16, 20, 24, 28, 32, 36, 40
SDP = 44
sG, sR, sW, sTAG, sD, sXCC = 46, 47, 48, 49, 50, 51
sT0, sT1, sT2, sT3, sT4, sT5 = 52, 53, 54, 55, 56, 57
sO1, sO2, sO3 = 58, 59, 60
sFLG = 61
sSPIN = 62
sSH = 44
sFT, sT = 63, 64
sM0 = 65
sX, sCH = 66, 67
sMK = 68
sPC = 70
sKap = 72
sNEED = 73
sDV, sDM = 74, 75
sP = 92
sURB, sQQ, sQ3, sTW1, sTW2, sQ4, sFL, sPH = 92, 93, 94, 95, 96, 97, 98, 99
sKV = 45
sF3, sPP = 16, 70
sUS, sC1, sC2 = 15, 19, 18
sRT, sDT, sSB, sRS, sRI, sHB, sFA = 8, 9, 10, 11, 12, 13, 14
SW1T = 4
SSTAMP = 76

def v(i, n=1): return 'v%d' % i if n == 1 else 'v[%d:%d]' % (i, i + n - 1)
def a(i, n=1): return 'a%d' % i if n == 1 else 'a[%d:%d]' % (i, i + n - 1)
def srd(i): return 's[%d:%d]' % (i, i + 3)

def merge(main, fill, first=0, last=None):
    if last is None: last = len(main) - 1
    n = last - first + 1
    out = []; fi = 0
    for i, m in enumerate(main):
        out.append(m)
        if first <= i <= last:
            tgt = (len(fill) * (i - first + 1) + n - 1) // n
            while fi < tgt: out.append(fill[fi]); fi += 1
    out += fill[fi:]
    return out

def round_bf(g, r):
    g('v_cvt_pk_bf16_f32 %s, %s, %s\nv_lshlrev_b32 %s, 16, %s' % (v(r), v(r), v(r), v(r), v(r)))

def allreduce(g, regs, tmp):
    for ctl in ('quad_perm:[1,0,3,2]', 'quad_perm:[2,3,0,1]', 'row_half_mirror', 'row_mirror'):
        g('s_nop 1')
        for r in regs: g('v_add_f32_dpp %s, %s, %s %s row_mask:0xf bank_mask:0xf' % (v(r), v(r), v(r), ctl))
    for op in ('v_permlane16_swap_b32', 'v_permlane32_swap_b32'):
        for r, t in zip(regs, tmp): g('v_mov_b32 %s, %s' % (v(t), v(r)))
        g('s_nop 1')
        for r, t in zip(regs, tmp): g('%s %s, %s' % (op, v(r), v(t)))
        g('s_nop 1')
        for r, t in zip(regs, tmp): g('v_add_f32 %s, %s, %s' % (v(r), v(r), v(t)))

SPIN_MAX = 1 << 20
CODE_BYTES = 23808
SSMP = 4352
SSMC = 64 + 4 * SSMP + 192
OPT = dict(urtouch='p', w1first=0, w1pace=(42, 140), w1conv=0, w1ahead=8, nh0=12, htouch='w3', htfl='', nH=12, w1fl='', urfl='', Hfl='', cq2=0, cq3=84, qd=2, apre=3, qtouch=1, cf=5, ct1=-3, ct1b=4, ct2=6, j0=16, agg=1, slp=0, pw=(1, 4), mj=(0, 27), e0=2, e1=18, fa=25, xn=100, sep=1, fl3=1, t2pos=4, cln=-1, cpe=0, cpn=0, zw=0, nhb=6, cpw=0, hj=(0, 28), hpos=20, hlines=24, hst='nt', wbn=-1, wbr=31, earlyH=1, mj1=16, htst='', xbst='', ost='nt', dense=0, cw=34, cp0=24, w1warm=0, ssmpos=0, urpos=0)

def poll_pair(g, offL, offG, need_sgpr, vaddr, vtmp):
    L = g.new('Lp'); D = g.new('Lpd')
    g('s_lshl_b32 s%d, s%d, 7' % (sT0, sG))
    g('v_and_b32 %s, 31, v1\nv_lshlrev_b32 %s, 2, %s' % (v(vaddr), v(vaddr), v(vaddr)))
    g('v_mov_b32 %s, %d\nv_cmp_lt_u32 vcc, 31, v1\ns_nop 1\nv_cndmask_b32 %s, %d, %s, vcc' % (v(vtmp), offG - offL, v(vtmp), 0, v(vtmp)))
    g('v_add_u32 %s, %s, %s\ns_add_u32 s%d, s%d, %d\ns_mov_b32 s%d, 0' % (v(vaddr), v(vaddr), v(vtmp), sT0, sT0, offL, sSPIN))
    g.label(L)
    g('buffer_load_dword %s, %s, %s, s%d offen sc1' % (v(vtmp), v(vaddr), srd(SWS), sT0))
    g('s_add_u32 s%d, s%d, 1\ns_cmp_gt_u32 s%d, %d\ns_cbranch_scc1 %s' % (sSPIN, sSPIN, sSPIN, SPIN_MAX, D))
    g('s_waitcnt vmcnt(0)')
    g('v_cmp_eq_u32 vcc, s%d, %s' % (sTAG, v(vtmp)))
    g('s_nop 0\ns_or_b32 s%d, vcc_lo, vcc_hi\ns_and_b32 s%d, s%d, s%d\ns_cmp_lg_u32 s%d, s%d\ns_cbranch_scc1 %s' % (sT1, sT1, sT1, need_sgpr, sT1, need_sgpr, L))
    g.label(D)
    g('s_waitcnt vmcnt(0)')

def put_flag(g, off_sgpr, flavour, second=None):
    L = g.new('Lf')
    g('s_cmp_lg_u32 s%d, 0\ns_cbranch_scc1 %s' % (sW, L))
    g('v_mov_b32 v14, s%d\nv_mov_b32 v15, 0\ns_mov_b64 exec, 1' % sTAG)
    g('buffer_store_dword v14, v15, %s, s%d offen %s' % (srd(SWS), off_sgpr, flavour))
    if second is not None: g('buffer_store_dword v14, v15, %s, s%d offen sc1' % (srd(SWS), second))
    g('s_mov_b64 exec, -1')
    g.label(L)

def ssm_loads(g):
    for i in range(2):
        g.vmem('buffer_load_dwordx4 %s, v5, %s, s%d offen offset:%d nt' % (v(184 + 8 * i, 4), srd(SSSM), sDV, 1024 * i))
        g.vmem('buffer_load_dwordx2 %s, v5, %s, s%d offen offset:%d nt' % (v(188 + 8 * i, 2), srd(SSSM), sDV, 1024 * i + 16))

def s1tail(g, pos):
    if OPT['ssmpos'] == pos:
        ssm_loads(g)
        g.vmem('global_load_ushort v112, v113, s[%d:%d]' % (SDP, SDP + 1), 'ssm')
    if OPT['urpos'] == pos:
        if OPT['urtouch']:
            g('v_and_b32 v75, 15, v1\nv_lshlrev_b32 v73, 7, v75\nv_add_u32 v73, s%d, v73\ns_lshl_b32 s%d, s%d, 4\nv_add_u32 v75, s%d, v75\nv_lshlrev_b32 v75, 12, v75\nv_add_u32 v75, s%d, v75' % (sQQ, sO3, sW, sO3, sURB))
            g('v_cmp_gt_u32 vcc, %d, v1\ns_nop 1\nv_cndmask_b32 v75, v73, v75, vcc' % (16 if OPT['qtouch'] else 64))
            g.vmem('buffer_load_dword v10, v75, %s, 0 offen %s' % (srd(SWS), OPT['urtouch'].replace('p', '')))

def prologue(g):
    if OPT['cpe']: g('s_getpc_b64 s[%d:%d]\nv_min_u32 v2, %d, v0\nv_lshlrev_b32 v2, 7, v2\nglobal_load_dword v10, v2, s[%d:%d] offset:64' % (sPC, sPC + 1, OPT['cpe'] - 1, sPC, sPC + 1))
    for (s, off) in ((SQ, 0), (SK, 8), (SV, 16), (SWS, 88)): g('s_load_dwordx2 s[%d:%d], s[0:1], %d' % (s, s + 1, off))
    g('s_cmp_ge_u32 s2, 256\ns_cbranch_scc1 L_exit')
    if g.diag: g(('s_memrealtime' if g.zoom else g.clk) + ' s[100:101]')
    g('v_and_b32 v1, 63, v0\nv_lshrrev_b32 v2, 6, v0\ns_and_b32 s%d, s2, 7\nv_readfirstlane_b32 s%d, v2\ns_lshr_b32 s%d, s2, 3' % (sG, sW, sR))
    g('s_mov_b32 s%d, 0x200000\ns_mov_b32 s%d, 0x20000' % (SQ + 2, SQ + 3))
    g('s_mov_b64 s[%d:%d], s[%d:%d]\ns_mov_b64 s[%d:%d], s[%d:%d]\ns_mov_b32 s%d, 0x%x\ns_mov_b32 s%d, s%d' % (SK + 2, SK + 3, SQ + 2, SQ + 3, SV + 2, SV + 3, SQ + 2, SQ + 3, SWS + 2, WS_BYTES, SWS + 3, SQ + 3))
    g('v_lshlrev_b32 v5, 4, v1')
    g('s_lshl_b32 s%d, s%d, 5\ns_add_u32 s%d, s%d, s%d\ns_lshl_b32 s%d, s%d, 2\ns_add_u32 s%d, s%d, s%d\ns_lshl_b32 s%d, s%d, 11'
      % (sT2, sG, sT2, sT2, sR, sT3, sT2, sT3, sT3, sW, sT3, sT3))
    g('v_lshrrev_b32 v6, 3, v1\nv_lshlrev_b32 v6, 10, v6\nv_and_b32 v7, 7, v1\nv_lshl_add_u32 v6, v7, 4, v6')
    g('s_lshl_b32 s%d, s%d, 2\ns_add_u32 s%d, s%d, s%d\ns_lshl_b32 s%d, s%d, 14\ns_lshl_b32 s%d, s%d, 7\ns_add_u32 s%d, s%d, s%d\ns_add_u32 s%d, s%d, 7168'
      % (sT4, sR, sT4, sT4, sW, sT4, sT4, sT1, sG, sT4, sT4, sT1, sT5, sT4))
    g('v_add_u32 v7, s%d, v6\nv_subrev_u32 v7, 3072, v7\ns_lshl_b32 s%d, s%d, 13\ns_mov_b32 m0, s%d' % (sT4, sT0, sW, sT0))
    g('s_waitcnt lgkmcnt(0)')
    if g.diag and not g.zoom: g('s_mov_b32 s%d, s100' % SSTAMP)
    g(g.z('s0'))
    g.vmem('buffer_load_dwordx4 v[36:39], v5, %s, s%d offen nt' % (srd(SQ), sT3))
    g.vmem('buffer_load_dwordx4 v[40:43], v5, %s, s%d offen offset:1024 nt' % (srd(SQ), sT3), 'qrow')
    if OPT['sep']: g('s_load_dword s%d, s[%d:%d], %d' % (sTAG, SWS, SWS + 1, WS_EPOCH))
    else: g.vmem('buffer_load_dword v74, off, %s, 0 offset:%d' % (srd(SWS), WS_EPOCH), 'qrow')
    for (s, off) in ((SSH, 24), (SSSM, 32), (SDP, 40), (SW1, 56), (SW2, 64), (SOUT, 72), (SDBG, 80)): g('s_load_dwordx2 s[%d:%d], s[0:1], %d' % (s, s + 1, off))
    g('s_mov_b64 exec, 0xffffff')
    g.vmem('buffer_load_dwordx4 v7, %s, 0 offen nt lds' % srd(SK))
    g('s_mov_b64 exec, -1\ns_add_u32 m0, m0, 384\n' + ('s_nop 0' if OPT['cpe'] else 's_getpc_b64 s[%d:%d]' % (sPC, sPC + 1)))
    g.vmem('buffer_load_dwordx4 v6, %s, s%d offen nt lds' % (srd(SK), sT4))
    g.vmem('buffer_load_dwordx4 v6, %s, s%d offen offset:1024 nt lds' % (srd(SK), sT5))
    g('s_add_u32 m0, m0, %d\ns_lshl_b32 s%d, s%d, 3' % (4096 - 384, sT1, sR))
    g.vmem('buffer_load_dwordx4 v6, %s, s%d offen nt lds' % (srd(SV), sT4))
    g.vmem('buffer_load_dwordx4 v6, %s, s%d offen offset:1024 nt lds' % (srd(SV), sT5))
    g('v_add_u32 v2, s%d, v1\nv_cmp_gt_u32 vcc, %d, v1\ns_getreg_b32 s%d, hwreg(HW_REG_XCC_ID)\ns_add_u32 m0, m0, 2048\nv_cndmask_b32 v2, v2, v1, vcc\nv_lshlrev_b32 v2, 7, v2\nv_min_u32 v2, %d, v2' % (sT1, 0 if OPT['cpe'] else OPT['cp0'], sXCC, CODE_BYTES))
    for (s, n) in ((SSH, 4096), (SSSM, 4096), (SW1, 512 * 3584), (SW2, 1792 * 1024), (SOUT, 0x200000), (SDBG, 256)):
        g('s_mov_b32 s%d, 0x%x\ns_mov_b32 s%d, 0x20000' % (s + 2, n, s + 3))
    g('s_and_b32 s%d, s%d, 15\ns_or_b32 s%d, s%d, 0x80\nv_mov_b32 v8, s%d\nv_mov_b32 v9, s%d\nv_and_b32 v3, 31, v1\ns_add_u32 s%d, s%d, %d' % (sXCC, sXCC, sXCC, sXCC, sXCC, sT2, sX, sT0, LX))
    g('v_lshlrev_b32 v4, 4, v3\ns_lshl_b32 s%d, s%d, 9\nv_add_u32 v4, s%d, v4\ns_lshl_b32 s%d, s%d, 5\ns_cmp_lg_u32 s%d, 0\ns_waitcnt lgkmcnt(0)' % (sT1, sG, sT1, sT1, sG, sW))
    g('s_cbranch_scc1 L_nocen\ns_mov_b64 exec, 0x%x\nglobal_load_dword v10, v2, s[%d:%d]\ns_mov_b64 exec, 1\nbuffer_store_byte v8, v9, %s, 0 offen\ns_mov_b64 exec, -1' % (0xff000000 if OPT['cpe'] else (1 << (OPT['cp0'] + 8)) - 1, sPC, sPC + 1, srd(SDBG)))
    if OPT['cpn']: g.l = [x for x in g.l if 'global_load_dword v10, v2' not in x]
    g.label('L_nocen')
    g.vmem('buffer_load_dwordx4 v[44:47], v4, %s, 0 offen' % srd(SSH))
    g.vmem('buffer_load_ubyte v14, v3, %s, s%d offen sc1' % (srd(SDBG), sT1), 'kv')
    g.vmem('buffer_load_dwordx4 v6, %s, s%d offen nt lds' % (srd(SQ), sT4))
    g.vmem('buffer_load_dwordx4 v6, %s, s%d offen offset:1024 nt lds' % (srd(SQ), sT5), 'qtile')
    g('s_lshl_b32 s%d, s%d, 6\ns_lshl_b32 s%d, s%d, 1\ns_add_u32 s%d, s%d, s%d\ns_lshr_b32 s%d, s%d, 1\ns_add_u32 s%d, s%d, s%d' % (sT3, sG, sT1, sR, sT3, sT3, sT1, sT1, sW, sT3, sT3, sT1))
    g('s_mul_i32 s%d, s%d, %d\ns_add_u32 s%d, s%d, %d\ns_lshl_b32 s%d, s%d, 1\nv_mov_b32 v8, s%d\nv_mov_b32 v9, 0\ns_lshl_b32 s%d, s%d, 12' % (sCH, sT1, 4 * SSMQ, sCH, sCH, LSSM, sT1, sT3, sT1, sT3, sT3))
    g('s_add_u32 s%d, s%d, s%d\ns_addc_u32 s%d, s%d, 0' % (SSSM, SSSM, sT3, SSSM + 1, SSSM + 1))
    g('s_and_b32 s%d, s%d, 1\ns_lshl_b32 s%d, s%d, 11' % (sKap, sW, sT1, sKap))
    g('s_mov_b32 s%d, s%d\nv_mov_b32 v113, v8' % (sDV, sT1))
    g('s_lshl_b32 s%d, s%d, 20\ns_sub_u32 s%d, 31, s%d\ns_lshl_b32 s%d, s%d, 7\ns_add_u32 s%d, s%d, s%d\ns_add_u32 s%d, s%d, 0x%x'
      % (sT3, sG, sT1, sR, sT1, sT1, sURB, sT3, sT1, sURB, sURB, WS_GRP + GUR))
    g('s_lshl_b32 s%d, s%d, 7\ns_lshl_b32 s%d, s%d, 2\ns_add_u32 s%d, s%d, s%d' % (sT3, sG, sT1, sR, sFLG, sT3, sT1))
    g(g.z('p_is'))
    g('s_mul_i32 s%d, s%d, 9216\ns_add_u32 s%d, s%d, s%d\nv_mov_b32 v12, 0\nv_lshlrev_b32 v11, 2, v1\nv_add_u32 v13, s%d, v11\nv_add_u32 v11, s%d, v11' % (sT1, sKap, sT1, sT1, sCH, sCH, sT1))
    g('s_mul_i32 s%d, s%d, 136\nv_add_u32 v9, s%d, v11\ns_lshl_b32 s%d, s%d, 7\nv_add_u32 v11, s%d, v11\ns_mov_b64 exec, 0xffff' % (sT1, sKap, sT1, sT1, sKap, sT1))
    g('ds_write_b32 v13, v12\ns_mov_b64 exec, 0xffffffff\nds_write_b32 v9, v12 offset:%d\nds_write_b32 v11, v12 offset:%d\ns_mov_b64 exec, -1' % (ssm_blk(0) + 4096, ssm_blk(1) + 40 + 4096))
    g('s_lshl_b32 s%d, s%d, 11\ns_add_u32 s%d, s%d, s%d\nv_add_u32 v111, s%d, v5' % (sT1, sKap, sT1, sT1, sCH, sT1))
    g('s_lshl_b32 s%d, s%d, 2\ns_add_u32 s%d, s%d, s%d\ns_lshl_b32 s%d, s%d, 4\ns_add_u32 s%d, s%d, 0x%x' % (sQ3, sT2, sQ3, sQ3, sW, sQ3, sQ3, sQ3, sQ3, WS_ST))
    g('s_lshl_b32 s%d, s%d, 20\ns_lshl_b32 s%d, s%d, 13\ns_add_u32 s%d, s%d, s%d\ns_lshl_b32 s%d, s%d, 11\ns_add_u32 s%d, s%d, s%d\ns_add_u32 s%d, s%d, 0x%x' % (sT1, sG, sT2, sR, sQQ, sT1, sT2, sT1, sW, sQQ, sQQ, sT1, sQQ, sQQ, WS_GRP + GQQ))
    g('v_lshrrev_b32 v8, 5, v1\nv_lshlrev_b32 v8, 10, v8\nv_lshl_add_u32 v8, v3, 2, v8\nv_add_u32 v108, s%d, v8\nv_add_u32 v109, 1024, v108\nv_add_u32 v110, 4096, v108' % sT0)
    g('v_mul_u32_u24 v8, 144, v3\nv_lshrrev_b32 v9, 5, v0\nv_sub_u32 v9, 7, v9\nv_lshl_add_u32 v8, v9, 4, v8\nv_add_u32 v118, %d, v8' % LX)
    g('v_bfe_u32 v8, v1, 3, 1\nv_lshlrev_b32 v8, 5, v8\nv_lshrrev_b32 v9, 4, v1\nv_add_u32 v8, v8, v9\ns_lshl_b32 s%d, s%d, 3\nv_add_u32 v8, s%d, v8' % (sT1, sW, sT1))
    g('v_mul_u32_u24 v8, 144, v8\nv_and_b32 v9, 7, v1\nv_lshl_add_u32 v8, v9, 4, v8\nv_add_u32 v119, %d, v8' % LX)
    g('v_lshrrev_b32 v8, 3, v1\ns_lshl_b32 s%d, s%d, 4\nv_add_u32 v8, s%d, v8\nv_lshlrev_b32 v120, 12, v8\nv_lshl_add_u32 v120, v9, 4, v120' % (sT1, sW, sT1))
    g('v_lshlrev_b32 v7, 15, v8\nv_lshl_add_u32 v7, v9, 4, v7\ns_lshl_b32 s%d, s%d, 16\nv_and_b32 v9, 1, v1\nv_lshrrev_b32 v4, 1, v1\nv_lshlrev_b32 v4, 10, v4\nv_lshl_add_u32 v4, v9, 4, v4\nv_add_u32 v4, s%d, v4' % (sT1, sW, sT1))
    g('v_and_b32 v9, 3, v1\nv_lshrrev_b32 v11, 3, v1\nv_lshl_add_u32 v11, v11, 2, v9\nv_bfe_u32 v15, v1, 2, 1\nv_lshlrev_b32 v116, 6, v11\nv_lshlrev_b32 v11, 5, v11\nv_lshl_add_u32 v11, v15, 4, v11')
    g('s_mul_i32 s%d, s%d, 6144\ns_add_u32 s%d, s%d, %d\nv_add_u32 v114, s%d, v11\nv_add_u32 v116, s%d, v116' % (sM0, sW, sM0, sM0, LQS, sM0, sM0))
    g('v_lshlrev_b32 v12, 3, v8\nv_lshl_add_u32 v12, v9, 1, v12\nv_and_b32 v11, 3, v8\nv_xor_b32 v12, v12, v11\nv_lshlrev_b32 v12, 4, v12\nv_lshl_add_u32 v12, v15, 14, v12\nv_add_u32 v12, %d, v12\nv_xor_b32 v13, 16, v12' % LX)
    g('v_and_b32 v8, 15, v1\nv_lshrrev_b32 v9, 4, v1\nv_lshl_add_u32 v11, v8, 2, v9\nv_bfe_u32 v15, v1, 1, 2\nv_xor_b32 v11, v11, v15\nv_lshlrev_b32 v127, 4, v11\nv_add_u32 v127, s%d, v127' % sX)
    g('v_lshlrev_b32 v2, 6, v9\nv_lshlrev_b32 v11, 5, v8\nv_sub_u32 v2, v2, v11')
    g('s_lshl_b32 s%d, s%d, 8\ns_add_u32 s%d, s%d, s%d\ns_add_u32 s%d, s%d, 512\nv_add_u32 v2, s%d, v2' % (sT1, sKap, sT1, sT1, sX, sT1, sT1, sT1))
    g('v_and_b32 v15, 1, v9\nv_lshlrev_b32 v3, 4, v15\nv_sub_u32 v3, v3, v11')
    g('s_lshl_b32 s%d, s%d, 11\ns_sub_u32 s%d, s%d, s%d\ns_add_u32 s%d, s%d, %d\nv_add_u32 v3, s%d, v3' % (sT1, sKap, sT1, sX, sT1, sT1, sT1, 2 * (2032 - 768), sT1))
    g('v_lshl_add_u32 v15, v15, 3, v8\nv_lshlrev_b32 v126, 1, v15\nv_add_u32 v126, %d, v126' % 34)
    g('v_cmp_lt_u32 vcc, 31, v1\nv_sub_u32 v15, 15, v15\nv_mov_b32 v11, 64\nv_cndmask_b32 v126, v126, 0, vcc\nv_cndmask_b32 v117, v11, v15, vcc\nv_add_u32 v126, s%d, v126' % sCH)
    g('v_add_u32 v8, 1, v8\nv_and_b32 v15, 3, v8\nv_min_u32 v11, 1, v15\nv_lshlrev_b32 v121, 3, v11\nv_and_b32 v11, 1, v15\nv_mul_u32_u24 v11, %d, v11\nv_add_u32 v121, v121, v11' % (SSMQ + 32))
    g('v_lshrrev_b32 v11, 1, v15\nv_mul_u32_u24 v11, %d, v11\nv_add_u32 v121, v121, v11' % (2 * SSMQ + 128))
    g('v_and_b32 v8, 0xfc, v8\nv_lshl_add_u32 v8, v9, 5, v8\nv_lshl_add_u32 v121, v8, 1, v121')
    g('s_lshl_b32 s%d, s%d, 8\ns_add_u32 s%d, s%d, s%d\ns_add_u32 s%d, s%d, %d\nv_add_u32 v121, s%d, v121' % (sT1, sKap, sT1, sT1, sCH, sT1, sT1, ssm_blk(0), sT1))
    g('s_mul_i32 s%d, s%d, 37\ns_lshr_b32 s%d, s%d, 8\ns_sub_u32 s%d, s%d, 28\ns_cmp_ge_u32 s%d, 28\ns_cselect_b32 s%d, s%d, s%d' % (sNEED, sR, sNEED, sNEED, sT1, sR, sR, sQ4, sT1, sNEED))
    g('s_mov_b32 s%d, s%d\ns_mov_b32 s%d, s%d\ns_mov_b32 s%d, s%d\ns_cselect_b32 s%d, 0, s%d' % (SW1T, SW1, SW1T + 1, SW1 + 1, SW1T + 2, SW1 + 2, SW1 + 2, SW1 + 2))
    g('s_mul_i32 s%d, s%d, 7\ns_sub_u32 s%d, s%d, s%d\ns_min_u32 s%d, s%d, 6\ns_and_b32 s%d, s%d, 1\ns_mul_i32 s%d, s%d, 7\ns_add_u32 s%d, s%d, s%d'
      % (sNEED, sQ4, sFL, sR, sNEED, sFL, sFL, sPH, sG, sNEED, sPH, sFT, sFL, sNEED))
    g('s_lshr_b32 s%d, s%d, 1\ns_lshl_b32 s%d, s%d, 2\ns_add_u32 s%d, s%d, s%d' % (sNEED, sG, sNEED, sNEED, sT, sNEED, sQ4))
    g('s_lshl_b32 s%d, s%d, 2\ns_add_u32 s%d, s%d, s%d\ns_mul_i32 s%d, s%d, %d\ns_mul_i32 s%d, s%d, 1792\ns_add_u32 s%d, s%d, s%d' % (sNEED, sR, sNEED, sNEED, sW, sT1, sNEED, 4 * 3584, sSPIN, sPH, sTW1, sT1, sSPIN))
    g('s_mul_i32 s%d, s%d, %d\ns_mul_i32 s%d, s%d, %d\ns_add_u32 s%d, s%d, s%d' % (sT1, sNEED, 56 * 128, sSPIN, sPH, 896 * 1024, sTW2, sT1, sSPIN))
    g('v_lshrrev_b32 v8, 4, v1\nv_mul_u32_u24 v8, 3584, v8\nv_and_b32 v9, 15, v1\nv_min_u32 v9, 13, v9\nv_lshl_add_u32 v6, v9, 7, v8')
    s1tail(g, 0)
    if OPT['fl3']: g('s_cmp_lg_u32 s%d, 3\ns_cbranch_scc1 L_nofl' % sW)
    g('v_and_b32 v11, 1, v1\nv_mul_u32_u24 v11, %d, v11\nv_bfe_u32 v9, v1, 1, 1\nv_mul_u32_u24 v9, %d, v9\nv_max_u32 v11, v11, v9\nv_bfe_u32 v9, v1, 2, 1\nv_mul_u32_u24 v9, %d, v9\nv_max_u32 v11, v11, v9\ns_lshl_b32 s%d, s%d, 7\ns_add_u32 s%d, s%d, %d' % (WS_F3L - WS_F1L, WS_CNT - WS_F1L, WS_F3A - WS_F1L, sT1, sG, sT1, sT1, WS_F1L))
    g('s_lshl_b32 s%d, s%d, 20\ns_add_u32 s%d, s%d, 0x%x\ns_sub_u32 s%d, s%d, s%d\nv_lshlrev_b32 v9, 7, v1\nv_add_u32 v9, s%d, v9\nv_cmp_lt_u32 vcc, 31, v1\ns_nop 1\nv_cndmask_b32 v11, v11, v9, vcc' % (sO3, sG, sO3, sO3, WS_GRP + GRI - 4096, sO3, sO3, sT1, sO3))
    (g if OPT['fl3'] else g.vmem)('buffer_load_dword v10, v11, %s, s%d offen sc1' % (srd(SWS), sT1))
    g.label('L_nofl')
    if OPT['ct1'] == -5: g.vmem('buffer_load_dword a255, v6, %s, s%d offen' % (srd(SW1T), sTW1))
    if OPT['w1warm']:
        g('s_lshl_b32 s%d, s2, 2\ns_add_u32 s%d, s%d, s%d\ns_mul_i32 s%d, s%d, %d\nv_min_u32 v11, 13, v1\nv_lshlrev_b32 v11, 7, v11\ns_mov_b64 exec, 0x3fff' % (sT1, sT1, sT1, sW, sT1, sT1, 14 * 128))
        g.vmem('buffer_load_dword v10, v11, %s, s%d offen' % (srd(SW1T), sT1))
        if OPT['w1warm'] > 1: g.vmem('buffer_load_dword v10, v11, %s, s%d offen' % (srd(SW2), sT1))
        g('s_mov_b64 exec, -1')
    g('v_bfe_u32 v9, v1, 2, 2\nv_lshlrev_b32 v9, 7, v9\nv_lshrrev_b32 v11, 4, v1\nv_lshl_add_u32 v9, v11, 5, v9\nv_and_b32 v11, 3, v1\nv_lshl_add_u32 v9, v11, 3, v9\ns_add_u32 s%d, s%d, 6144\nv_add_u32 v115, s%d, v9' % (sT1, sT0, sT1))
    g('v_lshrrev_b32 v8, 4, v1\nv_bfe_u32 v9, v1, 2, 2\nv_xor_b32 v9, v9, v8\nv_mul_u32_u24 v8, 3584, v8\nv_lshl_add_u32 v8, v9, 6, v8\nv_and_b32 v9, 3, v1\nv_lshl_add_u32 v8, v9, 4, v8')
    g('s_lshl_b32 s%d, s%d, 8\ns_mul_i32 s%d, s%d, %d\ns_add_u32 s%d, s%d, s%d\nv_add_u32 v87, s%d, v8' % (sT3, sFT, sT1, sW, 4 * 3584, sT3, sT3, sT1, sT3))
    g('s_lshl_b32 s%d, s%d, 1\ns_lshr_b32 s%d, s%d, 1\ns_add_u32 s%d, s%d, s%d\ns_lshl_b32 s%d, s%d, 12\ns_lshl_b32 s%d, s%d, 20\ns_add_u32 s%d, s%d, s%d\ns_add_u32 s%d, s%d, 0x%x'
      % (sT4, sR, sT1, sW, sT1, sT1, sT4, sUS, sT1, sC1, sG, sUS, sUS, sC1, sUS, sUS, WS_GRP + GUR))
    g('s_lshl_b32 s%d, s%d, 6\ns_add_u32 s%d, s%d, s%d\ns_lshl_b32 s%d, s%d, 6' % (sT1, sG, sT4, sT4, sT1, sT4, sT4))
    g('s_lshl_b32 s%d, s%d, 5\ns_add_u32 s%d, s%d, s%d\ns_add_u32 s%d, s%d, 0x%x\ns_lshl_b32 s%d, s%d, 12\ns_add_u32 s%d, s%d, 0x%x' % (sT1, sR, sC1, sC1, sT1, sC1, sC1, WS_GRP + GQQ, sC2, sW, sC2, sC2, WS_ST))
    g('s_mov_b32 s%d, %d\ns_mov_b32 s%d, %d\ns_mov_b32 s%d, %d' % (sO1, 57344, sO2, 2 * 57344, sO3, 3 * 57344))
    if OPT['cpn'] == 2: g('s_lshl_b32 s%d, s%d, 10\ns_lshl_b32 s%d, s%d, 8\ns_add_u32 s%d, s%d, s%d\nv_and_b32 v9, 1, v1\nv_lshlrev_b32 v9, 7, v9\nv_add_u32 v9, s%d, v9\nv_min_u32 v9, %d, v9' % (sT1, sR, sT3, sW, sT1, sT1, sT3, sT1, CODE_BYTES)); g.vmem('global_load_dword v10, v9, s[%d:%d]' % (sPC, sPC + 1))
    g(g.z('p_i2'))

def ln1(g):
    X = 48
    for r in range(64, 68): g('v_mov_b32 v%d, 0' % r)
    g('v_mov_b32 v72, 0x3f803f80')
    for i in range(4):
        for row in range(2):
            g('v_dot2c_f32_bf16 v%d, v%d, v72\nv_dot2c_f32_bf16 v%d, v%d, v%d' % (64 + row, 36 + 4 * row + i, 66 + row, 36 + 4 * row + i, 36 + 4 * row + i))
    un = ['s_nop 0'] * 8
    g('s_nop 2')
    R = [64, 65, 66, 67]; T = [68, 69, 70, 71]
    for ctl in ('quad_perm:[1,0,3,2]', 'quad_perm:[2,3,0,1]', 'row_half_mirror', 'row_mirror'):
        for r in R: g('v_add_f32_dpp %s, %s, %s %s row_mask:0xf bank_mask:0xf' % (v(r), v(r), v(r), ctl))
    for k, op in enumerate(('v_permlane16_swap_b32', 'v_permlane32_swap_b32')):
        for r, t in zip(R, T): g('v_mov_b32 %s, %s' % (v(t), v(r)))
        g(un[2 + k])
        for r, t in zip(R, T): g('%s %s, %s' % (op, v(r), v(t)))
        for r, t in zip(R, T): g('v_add_f32 %s, %s, %s' % (v(r), v(r), v(t)))
    g(g.z('l1'))
    for r in R: g('v_mul_f32 v%d, 0x3b000000, v%d' % (r, r))
    g('v_fma_f32 v66, -v64, v64, v66\nv_fma_f32 v67, -v65, v65, v67\nv_max_f32 v66, 0, v66\nv_max_f32 v67, 0, v67')
    g('v_cvt_pk_bf16_f32 v64, v64, v66\nv_cvt_pk_bf16_f32 v65, v65, v67\nv_and_b32 v66, 0xffff0000, v64\nv_and_b32 v67, 0xffff0000, v65')
    g('v_add_f32 v66, 0x3727c5ac, v66\nv_add_f32 v67, 0x3727c5ac, v67\nv_cvt_pk_bf16_f32 v66, v66, v67\nv_lshlrev_b32 v64, 16, v64\nv_lshlrev_b32 v65, 16, v65')
    g('v_and_b32 v67, 0xffff0000, v66\nv_lshlrev_b32 v66, 16, v66\nv_sqrt_f32 v67, v67\nv_sqrt_f32 v66, v66')
    g(un[4]); g(un[5])
    g('v_cvt_pk_bf16_f32 v66, v66, v67\nv_and_b32 v67, 0xffff0000, v66\nv_lshlrev_b32 v66, 16, v66\nv_rcp_f32 v70, v67\nv_rcp_f32 v68, v66\nv_mov_b32 v9, 0')
    g('v_mul_f32 v71, -v65, v70\nv_mul_f32 v69, -v64, v68\nv_mov_b32 v73, 0xff')
    for k in range(4): g('s_lshr_b32 s%d, s%d, %d\nv_bfi_b32 v%d, v73, s%d, v%d' % (sT1, sTAG, 8 * k, 68 + k, sT1, 68 + k))
    g('s_mov_b64 exec, 1')
    g.vmem('buffer_store_dwordx4 v[68:71], v9, %s, s%d offen sc1' % (srd(SWS), sQ3))
    g('s_mov_b64 exec, -1')
    g(g.z('l3'))

def acopies(g):
    for i in range(2):
        d = 184 + 8 * i
        for k in range(5): g('v_alignbit_b32 v%d, v%d, v%d, 16' % (200 + k, d + k + 1, d + k))
        o = 1024 * i
        g('ds_write_b128 v111, %s offset:%d' % (v(d, 4), ssm_blk(0) + o))
        for c, r0 in ((1, 200), (2, d + 1), (3, 201)):
            base = ssm_blk(c) + SSMA[c] + o
            if r0 % 2 == 0: g('ds_write_b64 v111, %s offset:%d\nds_write_b64 v111, %s offset:%d' % (v(r0, 2), base, v(r0 + 2, 2), base + 8))
            else:
                for k in range(4): g('ds_write_b32 v111, v%d offset:%d' % (r0 + k, base + 4 * k))
        g('s_waitcnt lgkmcnt(0)')

def aread(m): return ['ds_read_b64 %s, v121 offset:%d' % (v(128 + 16 * Ql + 4 * m + 2 * i, 2), 512 * Ql + 16 * m + 8 * i) for Ql in range(8) for i in range(2)]

def abuild(g):
    for j in range(8): g('ds_read_u16 v%d, v126 offset:%d' % (104 + j, 2 * j))
    for k, x in enumerate(aread(0)):
        g(x)
        if k == 5: g('s_waitcnt lgkmcnt(6)')
        if 6 <= k < 14:
            j = k - 6
            g('v_cmp_eq_u32 vcc, %d, v117\ns_nop 1\nv_cndmask_b32 v%d, v%d, v112, vcc' % (j, 104 + j, 104 + j))
            if j & 1: g('v_lshl_or_b32 v%d, v%d, 16, v%d' % (122 + j // 2, 104 + j, 103 + j))
        if k == 13: g('s_waitcnt lgkmcnt(8)')
    for m in range(1, 1 + OPT['apre']):
        for k, x in enumerate(aread(m)):
            g(x)
            if k % 4 == 1: g('s_waitcnt lgkmcnt(10)')

def p0_compute(g):
    g.wvm('kv')
    g(g.z('p_kv'))
    s1tail(g, 2)
    for i in range(0, 8, 2): g('ds_read2_b32 %s, v108 offset0:%d offset1:%d' % (v(16 + i, 2), 32 * i, 32 * i + 32))
    g('ds_read2_b32 v[24:25], v109 offset0:0 offset1:32\nds_read_b32 v26, v109 offset:256')
    for i in range(0, 8, 2): g('ds_read2_b32 %s, v110 offset0:%d offset1:%d' % (v(28 + i, 2), 32 * i, 32 * i + 32))
    for j in range(4):
        op0 = 'v_lshlrev_b32 v%d, 16, v%d' if j % 2 == 0 else 'v_and_b32 v%d, 0xffff0000, v%d'
        g(op0 % (100 + 2 * j, 44 + j // 2)); g(op0 % (101 + 2 * j, 46 + j // 2))
    K, V, U, C = 128, 152, 168, 100
    g('s_waitcnt lgkmcnt(4)')
    for i in range(11): g('v_lshlrev_b32 v%d, 16, v%d\nv_and_b32 v%d, 0xffff0000, v%d' % (K + 2 * i, 16 + i, K + 1 + 2 * i, 16 + i))
    for i in range(8): g('v_pk_mul_f32 %s, %s, %s' % (v(U + 2 * i, 2), v(K + 2 * i, 2), v(C + 6, 2)))
    for j in (2, 1, 0):
        for i in range(8): g('v_pk_fma_f32 %s, %s, %s, %s' % (v(U + 2 * i, 2), v(K + 2 * (i + 3 - j), 2), v(C + 2 * j, 2), v(U + 2 * i, 2)))
    g('s_waitcnt lgkmcnt(0)')
    for i in range(8): g('v_lshlrev_b32 v%d, 16, v%d\nv_and_b32 v%d, 0xffff0000, v%d' % (V + 2 * i, 28 + i, V + 1 + 2 * i, 28 + i))
    for i in range(8): g('v_pk_mul_f32 %s, %s, %s' % (v(U + 2 * i, 2), v(U + 2 * i, 2), v(V + 2 * i, 2)))
    for e in range(2):
        for jj in range(4): g('v_cvt_pk_bf16_f32 v%d, v%d, v%d' % (16 + 4 * e + jj, U + 2 * (7 - 2 * jj) + e, U + 2 * (6 - 2 * jj) + e))
    g('ds_write_b128 v118, v[16:19]\nds_write_b128 v118, v[20:23] offset:%d' % (32 * 144))
    g(g.z('p_u'))
    g.wvm('qtile')
    for i in range(4): g('ds_read_b64_tr_b16 %s, v115 offset:%d' % (v(76 + 2 * i, 2), 512 * i))
    g('s_waitcnt lgkmcnt(0)\ns_barrier')
    g('ds_read_b128 v[16:19], v119\nds_read_b128 v[20:23], v119 offset:%d' % (4 * 144))

def census(g):
    L = g.new('Lc')
    g('v_cmp_ne_u32 vcc, s%d, v14\ns_cbranch_vccz L_loc' % sXCC)
    g('s_lshl_b32 s%d, s%d, 5\nv_and_b32 v9, 31, v1\ns_mov_b32 s%d, 0' % (sT0, sG, sSPIN))
    g.label(L)
    g('buffer_load_ubyte v10, v9, %s, s%d offen sc1' % (srd(SDBG), sT0))
    g('s_add_u32 s%d, s%d, 1\ns_waitcnt vmcnt(0)' % (sSPIN, sSPIN))
    g('v_cmp_ne_u32 vcc, s%d, v10\ns_cbranch_vccz L_loc' % sXCC)
    g('s_cmp_lt_u32 s%d, 6\ns_cbranch_scc1 %s\ns_branch L_glob' % (sSPIN, L))

def dma4(g, vaddr, srdreg, n, vstep, tag=None, flags=''):
    out = []
    for i in range(n):
        j = i & 3
        so = '0' if j == 0 else 's%d' % (sO1 + j - 1)
        pre = ''
        if j == 0 and i > 0:
            pre = 's_add_u32 m0, m0, 4096\nv_add_u32 %s, %d, %s\n' % (v(vaddr), vstep, v(vaddr))
        out.append(pre + 'buffer_load_dwordx4 %s, %s, %s offen offset:%d %s lds' % (v(vaddr), srd(srdreg), so, 1024 * j, flags))
    return out

def w2reg(phi):
    return a(128 + 4 * phi, 4) if phi < 32 else v(160 + 4 * (phi - 32), 4)
def w2half(phi, t):
    return a(128 + 4 * phi + 2 * t, 2) if phi < 32 else v(160 + 4 * (phi - 32) + 2 * t, 2)

def tr_addr(g, dst, tmp, pitch_sh):
    g('v_lshrrev_b32 %s, 5, v1\nv_lshlrev_b32 %s, 2, %s\nv_bfe_u32 %s, v1, 2, 2\nv_add_u32 %s, %s, %s\nv_lshlrev_b32 %s, %d, %s'
      % (v(dst), v(dst), v(dst), v(tmp), v(dst), v(dst), v(tmp), v(dst), pitch_sh, v(dst)))
    g('v_bfe_u32 %s, v1, 4, 1\nv_lshl_add_u32 %s, %s, 5, %s\nv_and_b32 %s, 3, v1\nv_lshl_add_u32 %s, %s, 3, %s'
      % (v(tmp), v(dst), v(tmp), v(dst), v(tmp), v(dst), v(tmp), v(dst)))

def body(g, loc):
    fl = '' if loc else 'sc1'
    sfx = 'a' if loc else 'b'
    g('s_add_u32 s%d, s%d, 0x8000\ns_waitcnt lgkmcnt(0)' % (sT1, sURB))
    if OPT['agg']:
        g('s_or_b32 s%d, s%d, s%d\ns_cbranch_scc1 Lci%s\ns_lshl_b32 s%d, s%d, 7\ns_add_u32 s%d, s%d, %d\nv_mov_b32 v9, 0\ns_mov_b64 exec, 1\nbuffer_store_dword v9, v9, %s, s%d offen\ns_mov_b64 exec, -1\nLci%s:' % (sT2, sR, sW, sfx, sT2, sG, sT2, sT2, WS_CNT, srd(SWS), sT2, sfx))
    g.vmem('buffer_store_dwordx4 v[16:19], v120, %s, s%d offen %s' % (srd(SWS), sURB, fl))
    g.vmem('buffer_store_dwordx4 v[20:23], v120, %s, s%d offen %s' % (srd(SWS), sT1, fl))
    g.vmem('buffer_store_dwordx4 v[76:79], v5, %s, s%d offen %s' % (srd(SWS), sQQ, fl))
    g.vmem('buffer_store_dwordx4 v[80:83], v5, %s, s%d offen offset:1024 %s' % (srd(SWS), sQQ, fl), 'p0st')
    g(g.z('p_st'))
    t1 = 'buffer_load_dword a255, v6, %s, s%d offen' % (srd(SW1T), sTW1)
    g.wvm('ssm')
    acopies(g)
    g(g.z('d0'))
    g.wvm('p0st')
    g('s_barrier\ns_add_u32 s%d, s%d, %d' % (sT2, sFLG, WS_F1L if loc else WS_F1G))
    put_flag(g, sT2, fl)
    if OPT['ct1'] == -3: g(t1 if OPT['ct1b'] < 0 else 's_mov_b64 exec, 0xffffffff\n' + t1 + '\ns_mov_b64 exec, -1')
    g(g.z('p_fl'))
    g('v_mov_b32 v16, 0\nv_mov_b32 v17, 0\nv_lshlrev_b32 v8, 3, v1\nv_add_u32 v8, s%d, v8\nds_write_b64 v8, v[16:17] offset:4096' % sX)
    abuild(g)
    g(g.z('p_ab'))
    g.stamp(2)
    g('s_mov_b32 m0, s%d\nv_mov_b32 v126, v87\nv_mov_b32 v0, v114\ns_mov_b32 s%d, s%d\ns_add_u32 s%d, s%d, 31744\ns_mov_b32 s%d, s%d' % (sX, sQQ, sC1, sURB, sC1, sQ3, sC2))
    g('s_mov_b32 s%d, -1' % sNEED)
    poll_pair(g, WS_F1L, WS_F1G, sNEED, 8, 9)
    g.stamp(3)
    g.vm = Cnt(63); g.lg = Cnt(15)
    for i in range(4): g.vmem('buffer_load_dwordx4 v5, %s, s%d offen offset:%d sc1 %s lds' % (srd(SWS), sUS, 1024 * i, OPT['urfl']), 'ur')
    g('s_waitcnt lgkmcnt(0)')
    g('s_lshl_b32 s%d, s%d, 10' % (sKV, sW))
    w1dma = []
    for i in range(32):
        pre = 's_add_u32 m0, s%d, %d\n' % (sKV, 4096 * i)
        pre += 'v_add_u32 v126, %d, v126\n' % (4 * 57344) if i and i % 4 == 0 else '@'
        w1dma.append(pre + 'buffer_load_dwordx4 v126, %s, %s offen %s lds' % (srd(SW1), '0' if i % 4 == 0 else 's%d' % (sO1 + i % 4 - 1), OPT['w1fl']))
    ring = lambda i: v(48 + 4 * (i % 8), 4)
    reads = [(pi, m) for pi in range(0, -8, -1) for m in range(4)]
    g.wvm('ur')
    g.stamp(4)
    rd = lambda i: 'ds_read_b128 %s, v2 offset:%d' % (ring(i), (reads[i][0] + 7) * 512 + 16 * reads[i][1])
    AH = 4
    lq = []
    def lds(x, tag): lq.append(tag); return x
    def lwait(tag):
        idx = [i for i, t in enumerate(lq) if t == tag]
        if not idx: return ''
        n = len(lq) - 1 - idx[-1]; del lq[:idx[-1] + 1]
        return 's_waitcnt lgkmcnt(%d)\n' % n
    for i in range(AH): g(lds(rd(i), 'B%d' % i))
    seq = []
    for i, (pi, m) in enumerate(reads):
        first = True
        for k, n in enumerate(range(-pi, 8)):
            c = '0' if i == 0 else v(16 + 4 * n, 4)
            s = 'v_mfma_f32_16x16x32_bf16 %s, %s, %s, %s' % (v(16 + 4 * n, 4), v(128 + 16 * (pi + n) + 4 * m, 4), ring(i), c)
            pre = lwait('A%d_%d' % (m, pi + n)) if pi == 0 else ''
            if first:
                pre = lwait('B%d' % i) + pre
                if i + AH < len(reads): s += '\n' + lds(rd(i + AH), 'B%d' % (i + AH))
                first = False
            if OPT['apre'] <= i < 3:
                for x in aread(i + 1)[2 * k: 2 * k + 2]: s += '\n' + lds(x, 'A%d_%d' % (i + 1, k))
            if len(lq) > 12:
                s += '\ns_waitcnt lgkmcnt(8)'; del lq[:-8]
            seq.append(pre + s)
    Q32 = lambda it, j: (8, 9, 10, 11, 14, 15, 120, 121)[j] if it == 0 else 88 + 2 * j
    qqreads = ['ds_read_b128 %s, v0 offset:%d' % (v(80 + 4 * it, 4), 1024 * it) for it in range(2)]
    qqreads += ['ds_read_b128 %s, v116 offset:%d' % (v(88 + 4 * i, 4), 2048 + 2048 * (i >> 2) + 16 * (i & 3)) for i in range(8)]
    qn = []
    for it in range(2):
        for j in range(8):
            qn.append(('v_lshlrev_b32 v%d, 16, v%d' if j % 2 == 0 else 'v_and_b32 v%d, 0xffff0000, v%d') % (Q32(it, j), 80 + 4 * it + j // 2))
            qn.append('v_fmac_f32 v%d, v%d, v%d' % (89 + 16 * it + 2 * j, Q32(it, j), 88 + 16 * it + 2 * j))
    qql = ['s_mov_b32 m0, s%d\ns_nop 0\nbuffer_load_dwordx4 v4, %s, s%d offen sc1 lds' % (sM0, srd(SWS), sQQ), 'buffer_load_dwordx4 v4, %s, s%d offen offset:1024 sc1 lds\ns_add_u32 m0, m0, 2048\ns_nop 0' % (srd(SWS), sURB)]
    qql += ['buffer_load_dwordx4 v5, %s, s%d offen offset:%d sc1 lds' % (srd(SWS), sQ3, 1024 * i) for i in range(4)]
    TB = [sT0, sT1, sT2, sT3]
    chk = ['s_and_b32 s%d, s%d, 0xff\ns_bfe_u32 s%d, s%d, 0x80008' % (TB[0], sTAG, TB[1], sTAG), 's_bfe_u32 s%d, s%d, 0x80010\ns_lshr_b32 s%d, s%d, 24' % (TB[2], sTAG, TB[3], sTAG)]
    for i in range(8):
        r = 88 + 4 * i
        chk += ['v_xor_b32 v%d, s%d, v%d' % (r + k, TB[k], r + k) for k in range(4)]
        chk += ['v_or3_b32 v8, v%d, v%d, %s' % (r, r + 1, 'v8' if i else '0'), 'v_or3_b32 v8, v%d, v%d, v8' % (r + 2, r + 3)]
    chk += ['v_and_b32 v8, 0xff, v8', 'v_cmp_ne_u32 s[%d:%d], 0, v8' % (sMK, sMK + 1)]
    NF, NC = OPT['w1first'], OPT['w1conv']
    f0, f1 = OPT['w1pace']
    cf = OPT['cf']
    t2 = 'v_min_u32 v6, 55, v1\nv_lshlrev_b32 v6, 7, v6\nbuffer_load_dword a255, v6, %s, s%d offen' % (srd(SW2), sTW2)
    t2l = t2.replace('a255', 'v200').replace('v6', 'v201')
    ev = []
    if OPT['ct1b'] >= 0:
        if OPT['ct1'] >= 0: ev.append((OPT['ct1'], 'v', 's_mov_b64 exec, 0xffffffff\n' + t1 + '\ns_not_b64 exec, 0\ns_nop 3', None))
        ev.append((OPT['ct1b'], 'v', 's_lshl_b64 exec, exec, 32\n' + t1 + '\ns_not_b64 exec, 0\ns_nop 3', None))
    elif OPT['ct1'] >= 0: ev.append((OPT['ct1'], 'v', t1, None))
    if OPT['ct2'] >= 0: ev.append((OPT['ct2'], 'v', t2, None))
    c3, cw = OPT['cq3'], OPT['cw']
    c2 = OPT['cq2']
    assert NC <= 24 and c3 + 9 + 86 // OPT['qd'] < 144 and (OPT['ct2'] < 0 or OPT['ct2'] > max(OPT['ct1'], OPT['ct1b']))
    pos = [OPT['cf'] + 5 * i for i in range(NF)] + [f0 + i * (f1 - f0) // max(1, NC - NF - 1) for i in range(NC - NF)]
    assert all(p > cw for p in pos[16:]) and not any(c2 <= p <= c2 + 4 for p in pos)
    ev += [(p, 'v', w1dma[i].replace('@', 's_nop 0\n'), 'w1c') for i, p in enumerate(pos)]
    if NC > 16: ev.append((cw, 'x', 's_barrier', None))
    ev += [(c2 + i // 2, 'v', x, 'qq') for i, x in enumerate(qql)]
    ev += [(c3, 'w', 'qq', None)] + [(c3 + i // 2, 'x', x, None) for i, x in enumerate(qqreads)] + [(c3 + 8, 'x', 's_waitcnt lgkmcnt(0)', None)]
    ev += [(c3 + 9 + i // OPT['qd'], 'x', x, None) for i, x in enumerate(chk + qn)]
    ev.sort(key=lambda e: e[0])
    for i, m in enumerate(seq):
        g(g.z('c%d' % i))
        g(m)
        for (sl, kind, x, tag) in ev:
            if sl != i: continue
            if kind == 'v': g.vmem(x, tag)
            elif kind == 'w': g.wvm(x)
            elif kind == 'x': g(x)
    for i in range(4): g('ds_read_b128 %s, v3 offset:%d' % (ring(i), (3 - i) * 512))
    Lk = 'Lk1' + sfx; Lj = 'Lkj' + sfx
    g('s_cmp_lg_u32 s%d, 0\ns_cbranch_scc1 %s' % (sKap, Lk))
    for kap in range(2):
        if kap: g.label(Lk)
        for i in range(4):
            g('s_waitcnt lgkmcnt(%d)\nv_mfma_f32_16x16x32_bf16 %s, v[122:125], %s, %s' % (3 - i, v(16 + 4 * (4 * kap + i), 4), ring(i), v(16 + 4 * (4 * kap + i), 4)))
        if not kap: g('s_branch %s' % Lj)
    g.label(Lj)
    Ls = 'Lst' + sfx; Lo = 'Lsto' + sfx
    g('s_mov_b32 s%d, 0' % sSPIN)
    g.label(Ls)
    g('s_cmp_eq_u64 s[%d:%d], 0\ns_cbranch_scc1 %s' % (sMK, sMK + 1, Lo))
    g('s_add_u32 s%d, s%d, 1\ns_cmp_gt_u32 s%d, %d\ns_cbranch_scc1 %s' % (sSPIN, sSPIN, sSPIN, SPIN_MAX, Lo))
    g('s_sleep 4')
    for x in qql: g(x)
    g('v_and_b32 v8, 3, v1\nv_lshrrev_b32 v9, 3, v1\nv_lshl_add_u32 v8, v9, 2, v8\nv_lshlrev_b32 v8, 6, v8\nv_add_u32 v116, s%d, v8\ns_waitcnt vmcnt(0)' % sM0)
    for x in qqreads: g(x)
    g('s_waitcnt lgkmcnt(0)')
    for x in chk + qn: g(x)
    g('s_branch %s' % Ls)
    g.label(Lo)
    g('s_nop 4')
    g.stamp(5)
    for n in range(8): g('ds_write_b128 v127, %s offset:%d' % (v(16 + 4 * n, 4), 1024 * n))
    g('s_waitcnt vmcnt(0)')
    g(g.z('e1'))
    g('s_waitcnt lgkmcnt(0)\ns_barrier')
    g(g.z('e2'))
    for it in range(2):
        for kap in range(2):
            g('ds_read_b128 %s, v12 offset:%d' % (v(16 + 16 * it + 8 * kap, 4), 8192 * kap + 1024 * it))
            g('ds_read_b128 %s, v13 offset:%d' % (v(20 + 16 * it + 8 * kap, 4), 8192 * kap + 1024 * it))
    g('s_add_u32 s%d, s%d, 0x%x\ns_add_u32 s%d, s%d, 0x40000' % (sT4, sT4, WS_HT, sT3, sT4))
    for it in range(2):
        g('s_waitcnt lgkmcnt(%d)' % (4 - 4 * it))
        b = 16 + 16 * it
        for j in range(0, 8, 2): g('v_pk_add_f32 %s, %s, %s' % (v(b + j, 2), v(b + j, 2), v(b + 8 + j, 2)))
        for j in range(8): g('v_fmac_f32 v%d, v%d, v%d' % (Q32(it, j), 89 + 16 * it + 2 * j, b + j))
        for j in range(4): g('v_cvt_pk_bf16_f32 v%d, v%d, v%d' % (b + j, Q32(it, 2 * j), Q32(it, 2 * j + 1)))
        g('buffer_store_dwordx4 %s, v7, %s, s%d offen sc1 %s' % (v(b, 4), srd(SWS), sT4 if it == 0 else sT3, OPT['htst']))
    g(g.z('e3'))
    def g2setup():
        keep = g.l; g.l = []
        tr_addr(g, 2, 12, 6)
        g('s_lshl_b32 s%d, s%d, 20\ns_add_u32 s%d, s%d, 0x%x' % (sDM, sG, sDM, sDM, WS_GRP))
        g('s_lshr_b32 s%d, s%d, 3\ns_and_b32 s%d, s%d, 7\ns_lshr_b32 s%d, s%d, 1\ns_lshl_b32 s%d, s%d, 2\ns_add_u32 s%d, s%d, s%d\ns_lshl_b32 s%d, s%d, 2\ns_add_u32 s%d, s%d, s%d'
          % (sRT, sR, sDT, sR, sT1, sG, sT1, sT1, sT1, sT1, sRT, sT1, sT1, sSB, sT1, sW))
        g('s_lshl_b32 s%d, s%d, 15\ns_lshl_b32 s%d, s%d, 12\ns_add_u32 s%d, s%d, s%d\ns_lshl_b32 s%d, s%d, 11\ns_add_u32 s%d, s%d, s%d\ns_add_u32 s%d, s%d, 0x%x'
          % (sRS, sSB, sT1, sDT, sRS, sRS, sT1, sT1, sPH, sRS, sRS, sT1, sRS, sRS, WS_HT))
        g('s_lshl_b32 s%d, s%d, 12\ns_add_u32 s%d, s%d, 81920' % (sT5, sW, sT5, sT5))
        g('v_add_u32 v170, s%d, v2' % sT5)
        tr_addr(g, 3, 8, 7)
        g('v_bfe_u32 v8, v1, 3, 1\nv_xor_b32 v8, s%d, v8\nv_lshl_add_u32 v176, v8, 6, v3\nv_xor_b32 v173, 64, v176' % sPH)
        g('v_add_u32 v172, %d, v173\nv_add_u32 v174, 0x10000, v173\nv_add_u32 v175, %d, v176\nv_add_u32 v177, 0x10000, v176' % (LX, LX))
        g('v_and_b32 v8, 31, v1\nv_lshlrev_b32 v171, 3, v8\nv_mul_u32_u24 v179, 80, v8\nv_lshrrev_b32 v9, 5, v1\nv_lshl_add_u32 v179, v9, 3, v179\nv_add_u32 v179, s%d, v179' % sT5)
        g('v_lshrrev_b32 v8, 2, v1\nv_and_b32 v9, 3, v1\nv_mul_u32_u24 v180, 80, v8\nv_lshl_add_u32 v180, v9, 4, v180\nv_add_u32 v180, s%d, v180\nv_lshlrev_b32 v181, 10, v8\nv_lshl_add_u32 v181, v9, 4, v181' % sT5)
        g('s_lshl_b32 s%d, s%d, 3\ns_lshl_b32 s%d, 0x7f, s%d\ns_lshl_b32 s%d, s%d, 3\ns_add_u32 s%d, s%d, s%d\ns_lshl_b32 s%d, s%d, 2\ns_lshl_b32 s%d, s%d, 7\ns_add_u32 s%d, s%d, s%d' % (sT1, sRT, sNEED, sT1, sF3, sQ4, sF3, sF3, sFL, sF3, sF3, sT1, sG, sF3, sF3, sT1))
        g('s_lshl_b32 s%d, s%d, 2\ns_add_u32 s%d, s%d, s%d\ns_mul_i32 s%d, s%d, 57344\ns_add_u32 s%d, s%d, s%d\ns_lshl_b32 s%d, s%d, 8\ns_add_u32 s%d, s%d, s%d\ns_add_u32 s%d, s%d, 0x%x'
          % (sRI, sRT, sRI, sRI, sW, sHB, sRI, sHB, sHB, sDM, sRI, sRI, sRI, sRI, sDM, sRI, sRI, GRI))
        g('v_and_b32 v178, 31, v1\nv_lshlrev_b32 v178, 2, v178\nv_mov_b32 v9, %d\nv_cmp_lt_u32 vcc, 31, v1\ns_lshl_b32 s%d, s%d, 7\ns_cmp_lt_u32 s%d, 2\nv_cndmask_b32 v9, 0, v9, vcc\nv_add_u32 v178, v178, v9'
          % (WS_F3G - WS_F3L, sFA, sG, sW))
        g('s_cselect_b32 s%d, %d, 0\ns_add_u32 s%d, s%d, s%d\ns_add_u32 s%d, s%d, %d' % (sT1, WS_F3A - WS_F3L if OPT['earlyH'] else 0, sFA, sFA, sT1, sFA, sFA, WS_F3L))
        out = [x.strip() for x in g.l]; g.l = keep
        return out
    for x in g2setup(): g(x)
    tr_addr(g, 3, 8, 8)
    g('s_lshl_b32 s%d, s%d, 1\nv_bfe_u32 v8, v1, 2, 2\nv_xor_b32 v8, s%d, v8\nv_lshl_add_u32 v8, v8, 6, v3\nv_xor_b32 v9, 64, v8\nv_add_u32 v10, 0x10000, v8\nv_add_u32 v11, 0x10000, v9' % (sT0, sKap, sT0))
    g('s_lshr_b32 s%d, s%d, 1\ns_lshl_b32 s%d, s%d, 6\nv_xor_b32 v8, s%d, v8\nv_xor_b32 v9, s%d, v9\nv_xor_b32 v10, s%d, v10\nv_xor_b32 v11, s%d, v11' % (sSH, sW, sT0, sSH, sT0, sT0, sT0, sT0))
    for i in range(4): g('v_mov_b32 v%d, 0x3f803f80' % (112 + i))
    def csum(j): return ['v_mfma_f32_32x32x16_bf16 v[80:95], %s, v[112:115], %s' % (a(8 * j, 4), '0' if j == 0 else 'v[80:95]')]
    def w1step(j):
        for i in range(2):
            for t in range(2):
                g('ds_read_b64_tr_b16 %s, v%d offset:%d' % (a(8 * j + 4 * i + 2 * t, 2), 8 + i + 2 * (j >> 4), 4096 * (j & 15) + 2048 * t))
    if OPT['ct1'] == -6: g(t1.replace('a255', 'v200'))
    if OPT['ct2'] == -6: g(t2l)
    NX = (OPT['ct1'] == -6) + (OPT['ct2'] == -6)
    NA = min(32 - NC, OPT['w1ahead'])
    for x in w1dma[NC:NC + NA]: g(x.replace('@', 's_nop 0\n'))
    J0 = min(NC // 8 * 8, OPT['j0'])
    for j in range(J0):
        w1step(j)
        g('s_waitcnt lgkmcnt(8)')
        if j >= 2:
            for x in csum(j - 2): g(x)
    g('s_waitcnt vmcnt(%d)' % (NA + NX))
    NA += NC
    g(g.z('e4'))
    g('s_barrier')
    g('s_lshl_b32 s%d, s%d, 7\ns_lshl_b32 s%d, s%d, 2\ns_add_u32 s%d, s%d, s%d\ns_add_u32 s%d, s%d, %d' % (sT2, sG, sT1, sR, sT2, sT2, sT1, sT2, sT2, WS_F2))
    if loc and OPT['agg']:
        L = 'Lag' + sfx
        g('s_cmp_lg_u32 s%d, 0\ns_cbranch_scc1 %s\ns_lshl_b32 s%d, s%d, 7\ns_add_u32 s%d, s%d, %d\nv_mov_b32 v12, 1\nv_mov_b32 v14, s%d\nv_mov_b32 v15, 0\ns_mov_b64 exec, 1' % (sW, L, sT1, sG, sT0, sT1, WS_CNT, sTAG))
        g('buffer_atomic_add v12, v15, %s, s%d offen sc0\ns_add_u32 s%d, s%d, %d\ns_waitcnt vmcnt(0)\nv_cmp_eq_u32 vcc, 31, v12\ns_cbranch_vccz %sn' % (srd(SWS), sT0, sT0, sT1, WS_G2, L))
        g('buffer_store_dword v14, v15, %s, s%d offen sc1' % (srd(SWS), sT0))
        g.label(L + 'n')
        g('buffer_store_dword v14, v15, %s, s%d offen sc1\ns_mov_b64 exec, -1' % (srd(SWS), sT2))
        g.label(L)
    else: put_flag(g, sT2, 'sc1')
    g.stamp(6)
    if OPT['ct1'] == -7: g(t1.replace('a255', 'v200'))
    nis = max(NA, min(32, NC + 12))
    for x in w1dma[NA:nis]: g(x.replace('@', 's_nop 0\n'))
    g.vm = Cnt(63); g.lg = Cnt(15)
    g('s_lshr_b32 s%d, s%d, 1\ns_lshl_b32 s%d, s%d, 15\nv_add_u32 v121, s%d, v2\nv_add_u32 v122, 0x10000, v121\ns_lshl_b32 s%d, s%d, 13\nv_add_u32 v123, s%d, v2' % (sSH, sW, sT0, sSH, sT0, sT1, sW, sT1))
    g('s_lshl_b32 s%d, s%d, 2\ns_add_u32 s%d, s%d, s%d\ns_mul_i32 s%d, s%d, 57344\ns_lshl_b32 s%d, s%d, 13\ns_add_u32 s%d, s%d, s%d\ns_lshl_b32 s%d, s%d, 12\ns_add_u32 s%d, s%d, s%d'
      % (sT4, sQ4, sT4, sT4, sSH, sT3, sT4, sT0, sFL, sT3, sT3, sT0, sT0, sKap, sT3, sT3, sT0))
    g('s_lshl_b32 s%d, s%d, 20\ns_add_u32 s%d, s%d, 0x%x\ns_add_u32 s%d, s%d, s%d\ns_lshl_b32 s%d, s%d, 8\ns_add_u32 s%d, s%d, s%d\ns_add_u32 s%d, s%d, 0x%x'
      % (sDM, sG, sDM, sDM, WS_GRP, sT3, sT3, sDM, sT4, sT4, sT4, sT4, sDM, sT4, sT4, GRI))
    def poll_all(off, L, D, first):
        g('s_mov_b32 s%d, %d\ns_mov_b32 s%d, 0' % (sT0, off, sSPIN))
        if first:
            g('buffer_load_dwordx4 v[12:15], v5, %s, s%d offen sc1' % (srd(SWS), sT0))
            first()
            g('s_branch %sc' % L)
        g.label(L)
        g('buffer_load_dwordx4 v[12:15], v5, %s, s%d offen sc1' % (srd(SWS), sT0))
        g('s_add_u32 s%d, s%d, 1\ns_cmp_gt_u32 s%d, %d\ns_cbranch_scc1 %s' % (sSPIN, sSPIN, sSPIN, SPIN_MAX, D))
        g.label(L + 'c')
        g('s_waitcnt vmcnt(0)')
        g('v_xor_b32 v12, s%d, v12\nv_xor_b32 v13, s%d, v13\nv_xor_b32 v14, s%d, v14\nv_xor_b32 v15, s%d, v15' % (sTAG, sTAG, sTAG, sTAG))
        g('v_or_b32 v12, v12, v13\nv_or3_b32 v12, v12, v14, v15\nv_cmp_ne_u32 vcc, 0, v12\ns_cbranch_vccnz %s' % L)
        g.label(D)
    def htouch():
        nl = OPT['hlines']
        return ('s_mul_i32 s%d, s%d, %d\ns_mul_i32 s%d, s%d, %d\ns_add_u32 s%d, s%d, s%d\ns_add_u32 s%d, s%d, s%d\ns_add_u32 s%d, s%d, 0x%x\nv_min_u32 v8, %d, v1\nv_lshlrev_b32 v8, 7, v8\n'
                % (sT1, sR, 512 * nl, sT2, sW, 128 * nl, sT1, sT1, sT2, sT1, sT1, sDM, sT1, sT1, 0xE0000 - 16384 * nl, nl - 1)
                + 'buffer_load_dword v200, v8, %s, s%d offen %s@' % (srd(SWS), sT1, OPT['htfl'])
                + 's_add_u32 s%d, s%d, 0x%x\nv_and_b32 v8, 31, v1\nv_lshlrev_b32 v8, 7, v8\nbuffer_load_dword v200, v8, %s, s%d offen' % (sT1, sDM, GRI, srd(SWS), sT1))
    g('v_lshrrev_b32 v12, 3, v1\nv_bfe_u32 v13, v1, 4, 1\nv_lshlrev_b32 v13, 2, v13\nv_and_b32 v14, 7, v1\nv_xor_b32 v13, v13, v14\nv_lshlrev_b32 v12, 10, v12\nv_lshl_add_u32 v12, v13, 4, v12')
    g('s_mul_i32 s%d, s%d, %d\ns_mul_i32 s%d, s%d, %d\ns_add_u32 s%d, s%d, s%d\ns_and_b32 s%d, s%d, 7\ns_lshl_b32 s%d, s%d, 7\ns_add_u32 s%d, s%d, s%d\nv_add_u32 v127, s%d, v12\ns_mul_i32 s%d, s%d, 7168'
      % (sT0, sPH, 896 * 1024, sT1, sW, 56 * 1024, sT0, sT0, sT1, sT1, sR, sT1, sT1, sT0, sT0, sT1, sT0, sDV, sW))
    PB = [LX, 0, 32768, 65536]
    def w2pair(P):
        L = dma4(g, 127, SW2, 7, 32768)
        if P == 3: L[0] = 's_lshr_b32 s%d, s%d, 1\ns_mul_i32 s%d, s%d, %d\ns_add_u32 m0, m0, s%d\ns_nop 0\n' % (sMK, sW, sMK, sMK, 32768 - 14336, sMK) + L[0]
        L[0] = 's_add_u32 m0, s%d, %d\n%s\n' % (sDV, PB[P], 'v_add_u32 v127, %d, v127' % (229376 - 32768) if P else 's_nop 0') + L[0]
        return L
    LM = LX + 28672
    tpos = 99
    for o in range(3):
        if 8 * (o + 1) > NC: g('s_waitcnt vmcnt(%d)\ns_barrier' % max(0, nis - 8 * (o + 1) - (1 if 8 * (o + 1) > tpos else 0)))
        g(g.z('x%d' % o))
        for j in range(max(J0, 8 * o), 8 * o + 8):
            x = w1dma[nis].replace('@', '').split('\n') if nis < len(w1dma) else []
            if x: g(x[0]); nis += 1
            w1step(j)
            g('\n'.join(x[1:]))
            g('s_waitcnt lgkmcnt(8)')
            if j >= 2:
                for x in csum(j - 2): g(x)
    assert nis == len(w1dma)
    if OPT['ct2'] == -2: g(t2l)
    g('s_mov_b32 s%d, %d\ns_mov_b32 s%d, %d\ns_mov_b32 s%d, %d' % (sO1, 7168, sO2, 2 * 7168, sO3, 3 * 7168))
    g(g.z('xr'))
    g.stamp(7)
    g('s_cmp_lg_u32 s%d, 0\ns_cbranch_scc1 Lf2d%s' % (sW, sfx))
    if OPT['agg']:
        L = 'Lg' + sfx
        g('v_and_b32 v13, 7, v1\nv_lshlrev_b32 v13, 7, v13\ns_mov_b32 s%d, %d\ns_mov_b32 s%d, 0' % (sT0, WS_G2, sSPIN))
        g.label(L)
        g('buffer_load_dword v12, v13, %s, s%d offen sc1\ns_add_u32 s%d, s%d, 1\ns_waitcnt vmcnt(0)\nv_cmp_ne_u32 vcc, s%d, v12\ns_cbranch_vccz Lf2d%s' % (srd(SWS), sT0, sSPIN, sSPIN, sTAG, sfx))
        if OPT['slp']: g('s_sleep %d' % OPT['slp'])
        g('s_cmp_lt_u32 s%d, %d\ns_cbranch_scc1 %s' % (sSPIN, 64 if loc else 1, L))
    poll_all(WS_F2, 'Lf2' + sfx, 'Lf2d' + sfx, None)
    g('s_waitcnt vmcnt(0) lgkmcnt(0)\ns_barrier')
    g.stamp(8)
    g('s_cmp_ge_u32 s%d, 28\ns_cbranch_scc1 Lsw%s' % (sR, sfx))
    g.vm = Cnt(63); g.lg = Cnt(15)
    g('s_lshl_b32 s%d, s%d, 15\ns_lshl_b32 s%d, s%d, 13\ns_add_u32 s%d, s%d, s%d\ns_lshl_b32 s%d, s%d, 17\ns_add_u32 s%d, s%d, s%d\ns_mov_b32 m0, s%d\ns_add_u32 s%d, s%d, 0x%x'
      % (sT1, sSH, sT0, sKap, sT1, sT1, sT0, sT0, sT, sT0, sT0, sT1, sT1, sT0, sT0, WS_HT))
    def hdma(steps):
        L = []
        for n, st in enumerate(steps):
            for i in range(4):
                x = 'buffer_load_dwordx4 v5, %s, s%d offen offset:%d sc1 lds' % (srd(SWS), sT0, 1024 * i)
                if i == 0 and n: x = 's_add_u32 m0, m0, %d\ns_add_u32 s%d, s%d, %d\n' % (st, sT0, sT0, st) + x
                L.append((x, 'h%d' % (n // 2)))
        return L
    hd = hdma([0, 4096, 12288, 4096, 65536 - 20480, 4096, 12288, 4096])
    NH0 = OPT['nh0']
    assert NH0 <= 16
    NB = OPT['nhb']
    for x, t in hd[:NB]: g.vmem(x, t)
    g(g.z('x3'))
    for j in range(24, 32):
        w1step(j)
        if NB + j - 24 < NH0: g.vmem(*hd[NB + j - 24])
        g('s_waitcnt lgkmcnt(8)')
        for x in csum(j - 2): g(x)
    g('s_waitcnt lgkmcnt(0)')
    for x in csum(30) + csum(31): g(x)
    g('v_lshrrev_b32 v6, 5, v1\nv_lshlrev_b32 v6, 6, v6\ns_lshl_b32 s%d, s%d, 7\ns_add_u32 s%d, s%d, %d\nv_add_u32 v6, s%d, v6\nv_xor_b32 v7, 256, v6' % (sT1, sW, sT1, sT1, LM, sT1))
    g('s_nop 3\ns_mov_b32 exec_lo, 1\ns_mov_b32 exec_hi, 1')
    for i in range(4): g('ds_write_b128 v6, %s offset:%d' % (v(80 + 4 * i, 4), 16 * i))
    g('s_mov_b64 exec, -1')
    g('v_and_b32 v8, 31, v1\nv_lshlrev_b32 v4, 3, v8\ns_lshl_b32 s%d, s%d, 11\nv_add_u32 v182, s%d, v5\nv_xor_b32 v183, 2048, v182' % (sT1, sSH, sT1))
    g.wvm('h0')
    g('s_waitcnt lgkmcnt(0)\ns_barrier')
    for i in range(4): g('ds_read_b128 %s, v7 offset:%d' % (v(96 + 4 * i, 4), 16 * i))
    g.stamp(9)
    late = [(0, 0, x, t) for x, t in hd[NH0:]]
    ht = [OPT['hj'] + (htouch().split('@')[0].replace('v8', 'v202').replace('s%d' % sT1, 's%d' % sMK).replace('s%d' % sT2, 's%d' % (sMK + 1)), None)] if loc and OPT['htouch'] else []
    late = late[:OPT['hpos']] + ht + late[OPT['hpos']:]
    if OPT['ct2'] == -8: late.insert(OPT['t2pos'], (0, 0, t2l, None))
    if OPT['ct2'] == -1: late.append((0, 0, t2l, None))
    if OPT['ct2'] == -4: late.append((1, OPT['mj'][1] + 1, t2l, None))
    pb, pj = OPT['pw']
    late += [(pb, pj, x, None) for x in w2pair(0)] + [(1, 11, x, None) for x in w2pair(1) + w2pair(2)] + [(1, OPT['fa'] + 1, x, None) for x in w2pair(3)]
    AH = 5
    RG = lambda j: 128 + 4 * (j % 8)
    def rdh(B, j): return ['ds_read_b64_tr_b16 %s, v%d offset:%d' % (v(RG(j) + 2 * t, 2), 121 + B, 1024 * j + 512 * t) for t in range(2)]
    def epilogue(B):
        f = []
        for i in range(2):
            A = 16 + 32 * B + 16 * i; P = 112 if i == 0 else 160
            for k in range(16): f.append('v_fmac_f32 v%d, v120, v%d' % (A + k, 80 + 16 * i + k))
            for k in range(8): f.append('v_cvt_pk_bf16_f32 v%d, v%d, v%d' % (P + k, A + 2 * k, A + 2 * k + 1))
            for k in range(8): f.append('v_pk_max_i16 v%d, v%d, 0' % (P + k, P + k))
            for k in range(2): f.append('buffer_store_dwordx4 %s, v%d, %s, s%d offen offset:%d %s' % (v(P + 4 * k, 4), 182 + i, srd(SWS), sT3, 1024 * k, fl + ' ' + OPT['hst']))
        return f
    def mload(B): return 'buffer_load_dwordx2 v[124:125], v4, %s, s%d offen offset:%d sc1' % (srd(SWS), sT4, 512 * B)
    def mcheck(B):
        L = 'Lm%d%s' % (B, sfx)
        return ('v_cmp_ne_u32 vcc, s%d, v125\ns_cbranch_vccz %sk\ns_mov_b32 s%d, 0\n%s:\n%s\ns_add_u32 s%d, s%d, 1\ns_cmp_gt_u32 s%d, %d\ns_cbranch_scc1 %sk\ns_waitcnt vmcnt(0)\n'
                % (sTAG, L, sSPIN, L, mload(B), sSPIN, sSPIN, sSPIN, SPIN_MAX, L)
                + 'v_cmp_ne_u32 vcc, s%d, v125\ns_cbranch_vccnz %s\n%sk:\nv_lshlrev_b32 v120, 16, v124\nv_xor_b32 v120, 0x80000000, v120' % (sTAG, L, L))
    lq = ['cs'] * 4
    def lds(x, tag): lq.append(tag); return x
    def lwait(tag):
        idx = [i for i, t in enumerate(lq) if t == tag]
        if not idx: return ''
        n = len(lq) - 1 - idx[-1]; del lq[:idx[-1] + 1]
        return 's_waitcnt lgkmcnt(%d)' % n
    for j in range(AH):
        for x in rdh(0, j): g(lds(x, (0, j)))
    m0j, e0, e1 = OPT['mj'], OPT['e0'], OPT['e1']
    for B in range(2):
        ep = epilogue(0) if B else []
        slots = {k: [] for k in range(64)}
        for k, x in enumerate(ep): slots[2 * e0 + k * 2 * (e1 - e0) // len(ep)].append(x)
        for j in range(32):
            g(g.z('g%d_%d' % (B, j)))
            nb, nj = (B, j + AH) if j + AH < 32 else (B + 1, j + AH - 32)
            rr = rdh(nb, nj) if nb < 2 else []
            need = {(0, 10): 'h1', (0, 26): 'h2', (1, 10): 'h3'}.get((B, j))
            if need: g('s_waitcnt vmcnt(%d)\ns_barrier' % g.vm.need(need))
            if (B, j) == (1, e0 - 1):
                g.wvm('m'); g(mcheck(0))
            g(lwait((B, j)))
            for i in range(2):
                A = v(16 + 32 * B + 16 * i, 16)
                g('v_mfma_f32_32x32x16_bf16 %s, %s, %s, %s' % (A, a(8 * j + 4 * i, 4), v(RG(j), 4), '0' if j == 0 else A))
                if rr: g(lds(rr[i], (nb, nj)))
                for x in slots[2 * j + i]:
                    if x.startswith('buffer'): g.vmem(x, 'st0')
                    else: g(x)
                if late and (i == 1 or (OPT['dense'] and B == 0) or (B, j) > (1, OPT['fa'])) and late[0][:2] <= (B, j):
                    _, _, x, t = late.pop(0); g.vmem(x, t)
            if (B, j) == m0j: g.vmem(mload(0), 'm')
            if (B, j) == (1, OPT['fa']):
                g('s_waitcnt vmcnt(%d)\ns_barrier\ns_add_u32 s%d, s%d, %d' % (g.vm.need('st0'), sT2, sF3, WS_F3A + (0 if loc else 0x400)))
                put_flag(g, sT2, fl)
            if (B, j) == (1, OPT['mj1']): g.vmem(mload(1).replace('v[124:125]', 'v[168:169]'), 'm1')
    g(g.z('t0'))
    def hload(i):
        pre = 's_add_u32 s%d, s%d, 4096\n' % (sHB, sHB) if i and i % 4 == 0 else ''
        return pre + 'buffer_load_dwordx4 %s, v5, %s, s%d offen offset:%d sc1 %s' % (a(4 * i, 4), srd(SWS), sHB, 1024 * (i % 4), OPT['Hfl'])
    NH = OPT['nH']
    f3load = 'buffer_load_dword v9, v178, %s, s%d offen sc1' % (srd(SWS), sFA)
    f3test = 'v_cmp_eq_u32 vcc, s%d, v9\ns_nop 0\ns_or_b32 s%d, vcc_lo, vcc_hi\ns_and_b32 s%d, s%d, s%d\ns_cmp_lg_u32 s%d, s%d' % (sTAG, sT1, sT1, sT1, sNEED, sT1, sNEED)
    g.wvm('m1'); g('v_mov_b32 v124, v168\nv_mov_b32 v125, v169\ns_add_u32 s%d, s%d, %d' % (sT3, sT3, 2 * 57344)); g(mcheck(1))
    g(g.z('t1'))
    g(f3load + '\ns_nop 1')
    for x in epilogue(1): g(x)
    g(g.z('t2'))
    for x in late: g(x[2])
    g('s_add_u32 s%d, s%d, %d\nv_mov_b32 v14, s%d\nv_mov_b32 v15, 0\ns_waitcnt vmcnt(0)\ns_barrier' % (sT2, sF3, WS_F3L if loc else WS_F3G, sTAG))
    g('s_cmp_lg_u32 s%d, 3\ns_cbranch_scc1 Lnf%s\ns_mov_b64 exec, 1\nbuffer_store_dword v14, v15, %s, s%d offen %s\ns_mov_b64 exec, -1\nLnf%s:' % (sW, sfx, srd(SWS), sT2, fl, sfx))
    g(f3test + '\ns_cbranch_scc0 Lp3%sd' % sfx)
    g(g.z('t3'))
    g('s_branch Lg2%s' % sfx)
    g.label('Lsw' + sfx)
    g('s_lshl_b32 s%d, s%d, 17\ns_lshl_b32 s%d, s%d, 13\ns_add_u32 s%d, s%d, s%d\ns_add_u32 s%d, s%d, 0x%x\ns_mov_b32 m0, s%d\ns_nop 0' % (sT0, sT, sT1, sW, sT0, sT0, sT1, sT0, sT0, WS_HT, sT1))
    hs = [x for x, t in hdma([0, 4096] + [28672, 4096] * 3)]
    for x in hs[:12]: g(x)
    g('s_lshl_b32 s%d, s%d, 10\ns_add_u32 s%d, s%d, s%d\ns_lshl_b32 s%d, s%d, 8\ns_add_u32 s%d, s%d, s%d\ns_add_u32 s%d, s%d, 0x%x\nv_and_b32 v8, 31, v1\nv_lshlrev_b32 v3, 3, v8'
      % (sT4, sQ4, sT4, sT4, sDM, sT1, sKap, sT4, sT4, sT1, sT4, sT4, GRI))
    g('v_lshlrev_b32 v7, 5, v8\nv_add_u32 v7, %d, v7\ns_lshl_b32 s%d, s%d, 3\nv_add_u32 v6, s%d, v7\nv_mov_b32 v4, 0x3f803f80\ns_lshl_b32 s%d, s%d, 10\nv_add_u32 v7, s%d, v7\nv_mov_b32 v117, s%d'
      % (LM, sT1, sW, sT1, sT1, sKap, sT1, sTAG))
    ns = 12; nst = 0
    for b in range(4):
        g('s_waitcnt vmcnt(%d)' % (ns - 8 * (b + 1) + (nst if b == 3 else 0)))
        if b == 2: g('v_add_u32 v123, 0x10000, v123')
        for j in range(8):
            for t in range(2): g('ds_read_b64_tr_b16 %s, v123 offset:%d' % (v(48 + 4 * j + 2 * t, 2), 32768 * (b & 1) + 1024 * j + 512 * t))
            if j == 5: g('s_waitcnt lgkmcnt(6)')
        g('v_mov_b32 v106, 0\nv_mov_b32 v107, 0')
        for i in range(32):
            if i % 8 == 0: g('s_waitcnt lgkmcnt(%d)' % max(0, 8 - i // 2 * 1 if False else (12 - 4 * (i // 8 + 1) if i < 24 else 0)))
            g('v_dot2c_f32_bf16 v106, v%d, v4\nv_dot2c_f32_bf16 v107, v%d, v%d' % (48 + i, 48 + i, 48 + i))
            if i % 3 == 2 and ns < min(32, 8 * (b + 2) + 6): g(hs[ns]); ns += 1
        g('s_nop 2\nv_mov_b32 v108, v106\nv_mov_b32 v109, v107\ns_nop 1\nv_permlane32_swap_b32 v106, v108\nv_permlane32_swap_b32 v107, v109\ns_nop 1')
        g('v_add_f32 v106, v106, v108\nv_add_f32 v107, v107, v109\nds_write_b64 v6, v[106:107] offset:%d' % (1024 * b))
        if b & 1:
            g('s_waitcnt lgkmcnt(0)\ns_barrier\nds_read_b128 v[108:111], v7 offset:%d\nds_read_b128 v[112:115], v7 offset:%d\ns_waitcnt lgkmcnt(0)' % (1024 * (b - 1), 1024 * (b - 1) + 16))
            for x in ['v_pk_add_f32 v[108:109], v[108:109], v[110:111]', 'v_pk_add_f32 v[112:113], v[112:113], v[114:115]',
                      'v_pk_add_f32 v[108:109], v[108:109], v[112:113]',
                      'v_mul_f32 v108, 0x3b000000, v108', 'v_mul_f32 v109, 0x3b000000, v109',
                      'v_fma_f32 v109, -v108, v108, v109', 'v_max_f32 v109, 0, v109',
                      'v_cvt_pk_bf16_f32 v109, v109, v109', 'v_lshlrev_b32 v109, 16, v109',
                      'v_add_f32 v109, 0x3727c5ac, v109', 'v_cvt_pk_bf16_f32 v109, v109, v109', 'v_lshlrev_b32 v109, 16, v109',
                      'v_sqrt_f32 v109, v109', 's_nop 0', 'v_cvt_pk_bf16_f32 v116, v108, v109',
                      'buffer_store_dwordx2 v[116:117], v3, %s, s%d offen offset:%d %s' % (srd(SWS), sT4, 256 * (b - 1), fl)]: g(x)
            nst = 0
            g(g.z('u%d' % b))
    assert ns == 32
    if loc and OPT['htouch']: g(htouch().split('@')[0])
    if OPT['ct2'] in (-1, -4, -8): g(t2l)
    g('s_barrier')
    for P in range(4):
        for x in w2pair(P): g(x)
    g('s_waitcnt vmcnt(0)\ns_barrier')
    g.label('Lg2' + sfx)
    g.stamp(10)
    g.vm = Cnt(63); g.lg = Cnt(15)
    L = 'Lp3' + sfx; D = L + 'd'
    g('s_mov_b32 s%d, 0' % sSPIN)
    g.label(L)
    g('s_add_u32 s%d, s%d, 1' % (sSPIN, sSPIN))
    g(f3load)
    g('s_cmp_gt_u32 s%d, %d\ns_cbranch_scc1 %s\ns_waitcnt vmcnt(0)' % (sSPIN, SPIN_MAX, D))
    g(f3test + '\ns_cbranch_scc1 ' + L)
    g.label(D)
    for i in range(NH): g.vmem(hload(i), 'H%d' % i)
    g.stamp(11)
    side = ['s_mov_b32 m0, s%d\ns_nop 0\nbuffer_load_dwordx4 v5, %s, s%d offen sc1 lds' % (sT5, srd(SWS), sRS), 'buffer_load_dwordx4 v5, %s, s%d offen offset:1024 sc1 lds' % (srd(SWS), sRS),
                        'buffer_load_dwordx2 v[96:97], v171, %s, s%d offen sc1' % (srd(SWS), sRI)]
    def rdw(n):
        hlf, ks = divmod(n, 56)
        P, k = divmod(ks, 14)
        base = [172, 173, 173, 174][P]; off = k * 2048 + (32768 if P == 2 else 0) + (32768 - 14336 if P == 3 and k >= 7 else 0)
        return ['ds_read_b64_tr_b16 %s, v%d offset:%d' % (v(128 + 4 * (n % 8) + 2 * t, 2), base + 3 * hlf, off + 1024 * t) for t in range(2)]
    AW = 5
    for n in range(AW):
        for x in rdw(n): g(x)
    un = [('v_lshlrev_b32 v%d, 16, v%d' if j % 2 == 0 else 'v_and_b32 v%d, 0xffff0000, v%d') % (80 + j, 98 + j // 2) for j in range(16)]
    ex = ['s_xor_b32 s%d, s2, 1' % sT0, 's_and_b32 s%d, s%d, 7\ns_lshl_b32 s%d, s%d, 5' % (sT1, sT0, sT1, sT1), 's_add_u32 s%d, s%d, s%d\ns_lshl_b32 s%d, s%d, 2' % (sT1, sT1, sR, sT1, sT1),
          's_add_u32 s%d, s%d, s%d\ns_lshl_b32 s%d, s%d, 12' % (sT1, sT1, sW, sO1, sT1), 's_add_u32 s%d, s%d, 0x%x\ns_xor_b32 s%d, s%d, 0x80000' % (sO1, sO1, WS_XB, sO2, sO1),
          's_lshl_b32 s%d, s%d, 15\ns_lshl_b32 s%d, s%d, 7' % (sT0, sSB, sT1, sDT), 's_add_u32 s%d, s%d, s%d\ns_lshl_b32 s%d, s%d, 6' % (sT0, sT0, sT1, sT1, sPH),
          's_add_u32 s%d, s%d, s%d\ns_add_u32 s%d, s%d, 0x4000' % (sT0, sT0, sT1, sT1, sT0), ('v_cmp_ne_u32 vcc, s%d, v97\ns_cbranch_vccz Lr%sk\ns_mov_b32 s%d, 0\nLr%s:\nbuffer_load_dwordx2 v[96:97], v171, %s, s%d offen sc1\ns_add_u32 s%d, s%d, 1\ns_cmp_gt_u32 s%d, %d\ns_cbranch_scc1 Lr%sk\n'
           % (sTAG, sfx, sSPIN, sfx, srd(SWS), sRI, sSPIN, sSPIN, sSPIN, SPIN_MAX, sfx)
           + 's_waitcnt vmcnt(0)\nv_cmp_ne_u32 vcc, s%d, v97\ns_cbranch_vccnz Lr%s\nLr%sk:\nv_and_b32 v96, 0xffff0000, v96' % (sTAG, sfx, sfx)), 'v_rcp_f32 v96, v96', 'v_mov_b32 v11, s%d\nv_mov_b32 v12, 0xff' % sTAG, 'v_and_b32 v8, 0xff, v11\nv_bfe_u32 v9, v11, 8, 8', 'v_bfe_u32 v10, v11, 16, 8\nv_lshrrev_b32 v11, 24, v11']
    fl2 = ex
    send = []
    for i in range(4):
        send += ['v_bfi_b32 v%d, v12, v%d, v%d' % (16 + 4 * i + k, 8 + k, 16 + 4 * i + k) for k in range(4)]
        send.append('buffer_store_dwordx4 %s, v5, %s, s%d offen offset:%d sc1 %s' % (v(16 + 4 * i, 4), srd(SWS), sO1, 1024 * i, OPT['xbst']))
    for n in range(112):
        hlf, ks = divmod(n, 56)
        A = v(16 + 16 * hlf, 16)
        if n == 56: g.stamp(12)
        g(g.z('n%d' % n))
        if not hlf: g.wvm('H%d' % ks)
        g('s_waitcnt lgkmcnt(%d)' % (2 * min(AW - 1, 111 - n)))
        g('v_mfma_f32_32x32x16_bf16 %s, %s, %s, %s' % (A, v(128 + 4 * (n % 8), 4), a(4 * ks, 4), '0' if ks == 0 else A))
        if n + AW < 112:
            for x in rdw(n + AW): g(x)
        if n + NH < 56: g.vmem(hload(n + NH), 'H%d' % (n + NH))
        if n < len(side): g.vmem(side[n], 'side')
        if n == OPT['cln'] and loc:
            g('s_mul_i32 s%d, s%d, 7168\ns_add_u32 s%d, s%d, s%d\ns_sub_u32 s%d, s%d, %d\ns_add_u32 s%d, s%d, 4096' % (sT2, sDT, sT2, sT2, sHB, sT2, sT2, 13 * 4096, sT3, sT2))
            for d in range(8):
                if d < 7: g('s_cmp_lg_u32 s%d, %d\ns_cbranch_scc1 Lcl%d' % (sDT, d, d))
                for i in range(7): g('buffer_store_dwordx4 %s, v5, %s, s%d offen offset:%d sc1' % (a(4 * (7 * d + i), 4), srd(SWS), sT2 if i < 4 else sT3, 1024 * (i & 3)))
                if d < 7: g('s_branch Lcle\nLcl%d:' % d)
            g.label('Lcle')
        if n == OPT['wbn'] and loc:
            g('s_cmp_lg_u32 s%d, %d\ns_cbranch_scc1 Lwb\ns_cmp_lg_u32 s%d, 3\ns_cbranch_scc1 Lwb\nbuffer_wbl2 sc1\nLwb:' % (sR, OPT['wbr'], sW))
        if 30 <= n < 30 + len(fl2): g(fl2[n - 30])
        if n == 64:
            for i in range(4): g('ds_read_b64_tr_b16 %s, v170 offset:%d' % (v(98 + 2 * i, 2), 512 * i))
        if 72 <= n < 88: g(un[n - 72])
        if 59 <= n < 63:
            for x in send[5 * (n - 59): 5 * (n - 58)]: g(x)
        if OPT['xn'] <= n < OPT['xn'] + 4: g('buffer_load_dwordx4 %s, v5, %s, s%d offen offset:%d sc1' % (v(48 + 4 * (n - OPT['xn']), 4), srd(SWS), sO2, 1024 * (n - OPT['xn'])))
    g(g.z('y0'))
    L = 'Lx' + sfx; D = 'Lxd' + sfx
    g('s_mov_b32 s%d, 0\ns_branch %sc' % (sSPIN, L))
    g.label(L)
    for i in range(4): g('buffer_load_dwordx4 %s, v5, %s, s%d offen offset:%d sc1' % (v(48 + 4 * i, 4), srd(SWS), sO2, 1024 * i))
    g('s_add_u32 s%d, s%d, 1\ns_cmp_gt_u32 s%d, %d\ns_cbranch_scc1 %s' % (sSPIN, sSPIN, sSPIN, SPIN_MAX, D))
    g.label(L + 'c')
    for i in range(4):
        g('s_waitcnt vmcnt(%d)' % (3 - i))
        r = 48 + 4 * i
        for k in range(4): g('v_xor_b32 v%d, v%d, v%d' % (r + k, 8 + k, r + k))
        g('v_or3_b32 v13, v%d, v%d, %s\nv_or3_b32 v13, v%d, v%d, v13' % (r, r + 1, 'v13' if i else '0', r + 2, r + 3))
    g('v_and_b32 v13, 0xff, v13\nv_cmp_ne_u32 vcc, 0, v13\ns_cbranch_vccnz %s' % L)
    g.label(D)
    g('s_waitcnt vmcnt(0)\ns_nop 4')
    g(g.z('y1'))
    for blk in range(4):
        b = 4 * blk
        g('v_pk_add_f32 %s, %s, %s\nv_pk_add_f32 %s, %s, %s' % (v(48 + b, 2), v(48 + b, 2), v(32 + b, 2), v(50 + b, 2), v(50 + b, 2), v(34 + b, 2)))
        for j in range(4): g('v_fmac_f32 v%d, v96, v%d' % (80 + b + j, 48 + b + j))
        g('v_cvt_pk_bf16_f32 v%d, v%d, v%d\nv_cvt_pk_bf16_f32 v%d, v%d, v%d' % (64 + 2 * blk, 80 + b, 81 + b, 65 + 2 * blk, 82 + b, 83 + b))
        g('ds_write_b64 v179, %s offset:%d' % (v(64 + 2 * blk, 2), 16 * blk))
    g('s_waitcnt lgkmcnt(0)\nds_read_b128 v[72:75], v180\nds_read_b128 v[76:79], v180 offset:%d' % (16 * 80))
    g('s_waitcnt lgkmcnt(1)\nbuffer_store_dwordx4 v[72:75], v181, %s, s%d offen %s\ns_waitcnt lgkmcnt(0)\nbuffer_store_dwordx4 v[76:79], v181, %s, s%d offen %s' % (srd(SOUT), sT0, OPT['ost'], srd(SOUT), sT1, OPT['ost']))
    g(g.z('y2'))
    g('s_branch L_fin')

def finish(g):
    g.label('L_fin')
    g('s_cmp_lg_u32 s2, 0\ns_cbranch_scc1 L_noep\ns_mov_b32 s%d, %d' % (sT2, WS_EPOCH))
    put_flag(g, sT2, 'sc1')
    g.label('L_noep')
    if g.diag:
        g('s_waitcnt vmcnt(0)')
        g.stamp(13)
        if str(g.diag).startswith('amp'):
            i = int(g.diag[3:])
            if i >= 90:
                if i == 91: g('buffer_wbl2 sc1\ns_waitcnt vmcnt(0)')
                g('s_add_u32 s%d, s%d, 4000\ns_branch L_amp' % (sT0, SSTAMP)); i = 13
            g('s_sub_u32 s%d, s%d, s%d\ns_lshl_b32 s%d, s%d, 3\ns_add_u32 s%d, s%d, s%d' % (sT0, SSTAMP + i, SSTAMP, sT0, sT0, sT0, sT0, SSTAMP + 13))
            g.label('L_amp')
            g('s_memrealtime s[100:101]\ns_waitcnt lgkmcnt(0)\ns_sub_u32 s%d, s100, s%d\ns_cmp_lt_i32 s%d, 0\ns_cbranch_scc1 L_amp\ns_branch L_exit' % (sT1, sT0, sT1))
        if not g.zoom: g('s_mov_b32 s%d, s%d' % (SSTAMP + 15, sXCC))
        g('s_waitcnt lgkmcnt(0)')
        if g.zoom: g('s_mov_b32 s%d, s100' % (SSTAMP + 1))
        g('s_cmp_lg_u32 s%d, %d\ns_cbranch_scc1 L_exit' % (sW, OPT['zw']))
        for i in range(16): g('v_mov_b32 v%d, s%d' % (16 + i, SSTAMP + i))
        g('s_lshl_b32 s%d, s2, 6\ns_add_u32 s%d, s%d, 0x%x\nv_mov_b32 v8, 0\ns_mov_b64 exec, 1' % (sT0, sT0, sT0, WS_STAMP))
        for i in range(4): g('buffer_store_dwordx4 %s, v8, %s, s%d offen offset:%d' % (v(16 + 4 * i, 4), srd(SWS), sT0, 16 * i))
    g.label('L_exit')
    g('s_endpgm')

def build(diag=False, force=None, zoom=None):
    g = G(diag, zoom)
    prologue(g)
    g.wvm('qrow')
    g(g.z('p_q'))
    g(('s_add_u32 s%d, s%d, 0x%x' % (sTAG, sTAG, TAGC)) if OPT['sep'] else 'v_readfirstlane_b32 s%d, v74\ns_nop 3\ns_add_u32 s%d, s%d, 0x%x' % (sTAG, sTAG, sTAG, TAGC))
    ln1(g)
    p0_compute(g)
    g.stamp(1)
    if g.diag and not g.zoom: g('s_mov_b32 s%d, 0' % (SSTAMP + 14))
    import copy
    vm0 = copy.deepcopy(g.vm)
    if force == 'glob': g('s_waitcnt vmcnt(0)\ns_branch L_glob')
    else: census(g)
    g.label('L_loc')
    if g.diag and not g.zoom: g('s_mov_b32 s%d, 1' % (SSTAMP + 14))
    body(g, True)
    finish(g)
    g.label('L_mainend')
    g.vm = vm0
    g.label('L_glob')
    body(g, False)
    hdr = open('cdna_kernels/%s.s.ref' % NAME).read().split('; Override launch')[0]
    s = hdr + '; @launch grid=(256,1,1) block=(256,1,1) lds=%d\n' % LDS_BYTES
    s += '.amdgcn_target "amdgcn-amd-amdhsa--gfx950"\n.text\n.globl %s_kernel\n.p2align 8\n.type %s_kernel,@function\n%s_kernel:\n' % (NAME, NAME, NAME)
    s += '\n'.join(g.l) + '\n'
    s += '.section .rodata,"a"\n.p2align 6\n.amdhsa_kernel %s_kernel\n' % NAME
    s += ('  .amdhsa_next_free_vgpr 512\n  .amdhsa_next_free_sgpr 102\n  .amdhsa_accum_offset 256\n  .amdhsa_group_segment_fixed_size 0\n'
          '  .amdhsa_kernarg_size 96\n  .amdhsa_user_sgpr_count 2\n  .amdhsa_user_sgpr_kernarg_segment_ptr 1\n  .amdhsa_system_sgpr_workgroup_id_x 1\n.end_amdhsa_kernel\n')
    return s

ZOOMS = dict(
    e2e=['s9', 'g1_31', 't2', 's11', 's12', 'y0', 'y1', 's13'],
    a1=['s0', 'p_is', 'p_i2', 'p_q', 'l3', 'p_kv', 'p_u', 'p_st'],
    a2=['p_st', 'd0', 'p_fl', 'p_ab', 's3', 's4', 'c8', 'c32'],
    a3=['c32', 'c48', 'c57', 'c100', 'c143', 's5', 'e2', 'e3'],
    a4=['e3', 'e4', 's6', 'x0', 'x1', 's7', 's8', 's9'],
    a5=['y0', 'y1', 'y2', 's13'],
    sw=['s8', 'u0', 'u1', 'u2', 'u3', 's11'],
    g2=['s10', 's11', 's12', 'y0', 'y1', 's13'],
    g1t=['g1_26', 'g1_31', 't0', 't1', 't2', 's11', 's12', 'y0'],
    p2=['s11', 'n10', 'n20', 'n30', 'n31', 'n44', 'n56', 'y0'],
    w3b=['s6', 'x0', 'x1', 'x2', 's7', 's8', 'x3', 's9'],
    ep=['c143', 's5', 'e1', 'e2', 'e3', 'e4', 's6', 'x16'],
    ln=['s0', 'p_is', 'p_i2', 'p_q', 'l3', 'l4', 'p_qq', 'p_kv'],
    ln0=['p_is', 'p_q', 'l1', 'l2', 'l3', 'l4', 'p_qq', 'p_kv'],
    p1=['s0', 'p_q', 'p_kv', 'p_st', 'd0', 'p_fl', 'p_ab', 's3'],
    cv2=['s3', 's4', 'c56', 'c57', 'c143', 's5', 'e3', 's6'],
    p0=['s0', 'p_is', 'p_q', 'p_qq', 'p_kv', 'p_st', 'p_fl', 'p_ab'],
    conv=['s0', 'p_fl', 's3', 's4', 'c143', 's5', 's6', 's7'],
    w3=['s6', 's7', 's8', 's9', 's10', 's11', 's12', 's13'],
    g1a=['s9', 'g0_4', 'g0_10', 'g0_11', 'g0_18', 'g0_26', 'g0_27', 'g1_0'],
    g1b=['g1_0', 'g1_1', 'g1_2', 'g1_10', 'g1_11', 'g1_20', 'g1_25', 'g1_26'],
)
if __name__ == '__main__':
    for n, zz in ZOOMS.items(): open('zoom_%s.s' % n, 'w').write(build(diag='cyc', zoom=zz))
    open('cdna_kernels/%s.s' % NAME, 'w').write(build())
    open('diag.s', 'w').write(build(diag=True))
    open('diagcyc.s', 'w').write(build(diag='cyc'))
    open('glob.s', 'w').write(build(diag=True, force='glob'))
```
